```python
import torch

def _softmax(x, axis=-1):
    return torch.softmax(x, dim=axis)
def _gelu(x):
    return torch.nn.functional.gelu(x, approximate="tanh")
def _silu(x):
    return torch.nn.functional.silu(x)
def _sigmoid(x):
    return torch.sigmoid(x)
def _layernorm(x, axis=-1, eps=1e-5):
    m = x.mean(dim=axis, keepdim=True)
    v = x.var(dim=axis, keepdim=True, unbiased=False)
    return (x - m) / torch.sqrt(v + eps)
def _scatter_add(tgt, idx, src, axis=0):
    return tgt.clone().index_add_(axis, idx, src)
def _segment_sum(src, seg, n):
    out = torch.zeros((n,) + src.shape[1:], dtype=src.dtype)
    return out.index_add_(0, seg, src)
def _pad(x, pw):
    flat = tuple(v for pair in reversed(pw) for v in pair)
    return torch.nn.functional.pad(x, flat)

kernel_name = 'gated_mix__compressed_kv_cla__dense_activation_silu__decode'

def setup_inputs():

    _w = (lambda a: (lambda t: t.to(torch.bfloat16) if t.is_floating_point() else t)(torch.as_tensor(a)))
    def _A_setup():
        B, H, Sq, Sk, D, M = 2, 32, 1, 8192, 128, 512
        Dc = 4 * D
        return {
            "x": _w((lambda *s: torch.randn(*s, dtype=torch.bfloat16) * 0.05)(B, Sq, M)),
            "c_kv": _w((lambda *s: torch.randn(*s, dtype=torch.bfloat16) * 0.8)(B, Sk, Dc)),
            "w_q": _w((lambda *s: torch.randn(*s, dtype=torch.bfloat16) * 6.4)(M, H, D) * (M ** -0.5)),
            "w_uk": _w((lambda *s: torch.randn(*s, dtype=torch.bfloat16) * 6.4)(Dc, H, D) * (Dc ** -0.5)),
            "w_uv": _w((lambda *s: torch.randn(*s, dtype=torch.bfloat16) * 0.8)(Dc, H, D) * (Dc ** -0.5)),
            "w_o": _w((lambda *s: torch.randn(*s, dtype=torch.bfloat16) * 0.8)(H, D, M) * ((H * D) ** -0.5)),
        }
    _A_in = _A_setup()

    def _B_setup():
        B, S, D, F = 2, 1, 512, 1792
        return {
            "x": _w((lambda *s: torch.randn(*s, dtype=torch.bfloat16) * 0.05)(B, S, D)),
            "w1": _w((lambda *s: torch.randn(*s, dtype=torch.bfloat16) * 3.2)(D, F) * (D ** -0.5)),
            "w2": _w((lambda *s: torch.randn(*s, dtype=torch.bfloat16) * 1.6)(F, D) * (F ** -0.5)),
        }
    _B_in = _B_setup()

    return {
        "A_x": _A_in["x"],
        "A_c_kv": _A_in["c_kv"],
        "A_w_q": _A_in["w_q"],
        "A_w_uk": _A_in["w_uk"],
        "A_w_uv": _A_in["w_uv"],
        "A_w_o": _A_in["w_o"],
        "B_x": _B_in["x"],
        "B_w1": _B_in["w1"],
        "B_w2": _B_in["w2"],
        "gate_w": _w((lambda *s: torch.randn(*s, dtype=torch.bfloat16) * 0.05)(512) * 16.0),
    }

def reference(A_x, A_c_kv, A_w_q, A_w_uk, A_w_uv, A_w_o, B_x, B_w1, B_w2, gate_w):
    def _A_ref(x, c_kv, w_q, w_uk, w_uv, w_o):
        B, Sq, M = x.shape[0], x.shape[1], x.shape[2]
        Sk = c_kv.shape[1]
        H, D = w_q.shape[1], w_q.shape[2]
        q = torch.einsum("bqm,mhd->bhqd", x, w_q)
        k = torch.einsum("bkc,chd->bhkd", c_kv, w_uk)
        v = torch.einsum("bkc,chd->bhkd", c_kv, w_uv)
        scores = torch.einsum("bhqd,bhkd->bhqk", q, k) * (D ** -0.5)
        off = Sk - Sq
        qi = torch.arange(Sq)[:, None]
        kj = torch.arange(Sk)[None, :]
        cmask = kj <= (qi + off)
        scores = torch.where(cmask[None, None], scores, -1e9)
        p = _softmax(scores, axis=-1)
        ctx = torch.einsum("bhqk,bhkd->bhqd", p, v)
        return torch.einsum("bhqd,hdm->bqm", ctx, w_o)

    def _B_ref(x, w1, w2):
        h = torch.einsum("bsd,df->bsf", x, w1)
        h = _silu(h)
        out = torch.einsum("bsf,fd->bsd", h, w2)
        return out

    x = A_x
    g = _sigmoid((x * gate_w).sum(-1, keepdims=True))
    a = _A_ref(x, A_c_kv, A_w_q, A_w_uk, A_w_uv, A_w_o)
    b = _B_ref(x, B_w1, B_w2)
    return g * a + (1 - g) * b
```

```python
import re
from asmlib import NAME, WS_BYTES, STAMP_OFF, kernel_file

TRANS = ("v_exp_f32", "v_log_f32", "v_rcp_f32", "v_rsq_f32", "v_sqrt_f32", "v_sin_f32", "v_cos_f32")
REG_RE = re.compile(r"^(-|abs\()?([vas])(\d+)\)?$|^(-)?([vas])\[(\d+):(\d+)\]$")

def regs_of(tok):
    tok = tok.strip()
    if tok in ("vcc",): return {("s", "vcc")}
    if tok in ("exec", "exec_lo", "exec_hi"): return {("s", "exec")}
    if tok == "m0": return {("s", "m0")}
    m = REG_RE.match(tok)
    if not m: return set()
    if m.group(2): return {(m.group(2), int(m.group(3)))}
    return {(m.group(5), i) for i in range(int(m.group(6)), int(m.group(7)) + 1)}

class Ins:
    def __init__(self, text):
        self.text = text
        t = text.split(";")[0].strip()
        self.label = t.endswith(":")
        self.directive = t.startswith(".")
        self.op = t.split()[0] if t else ""
        rest = t[len(self.op):].strip()
        ops = [o.strip() for o in rest.split(",")] if rest else []
        mods = ""
        if ops:
            parts = ops[-1].split()
            ops[-1] = parts[0] if parts else ""
            mods = " ".join(parts[1:])
        self.ops = ops; self.mods = mods
        op = self.op
        self.mfma = op.startswith("v_mfma")
        self.valu = op.startswith("v_") and not self.mfma
        self.trans = op.replace("_e32", "").replace("_e64", "") in TRANS
        self.dpp = "_dpp" in op or "quad_perm" in mods or "row_" in mods
        self.perml = op.startswith("v_permlane")
        self.rdlane = op.startswith("v_readlane") or op.startswith("v_readfirstlane")
        self.vmem = op.startswith("buffer_") or op.startswith("global_")
        self.ds = op.startswith("ds_")
        self.salu = op.startswith("s_")
        self.ldsdma = self.vmem and (" lds" in " " + mods or "load_lds" in op)
        R = [regs_of(o) for o in ops]
        w = set(); r = set(); self.srcC = set(); self.srcAB = set(); self.stdata = set()
        if self.mfma:
            w = R[0]; self.srcAB = R[1] | R[2]; self.srcC = R[3]; r = R[1] | R[2] | R[3]
        elif self.valu:
            if self.perml and "swap" in op:
                w = R[0] | R[1]; r = R[0] | R[1]
            elif op.startswith(("v_add_co", "v_sub_co", "v_addc_co", "v_subb_co", "v_div_scale", "v_mad_u64")):
                w = R[0] | R[1]; r = set().union(*R[2:])
            else:
                w = R[0]; r = set().union(*R[1:]) if len(R) > 1 else set()
                if op.startswith(("v_fmac", "v_dot2c", "v_writelane")) or self.dpp: r |= R[0]
                if op.startswith("v_cndmask") and len(R) == 3: r |= {("s", "vcc")}
        elif self.ds:
            if op.startswith(("ds_read", "ds_bpermute", "ds_permute", "ds_swizzle")):
                w = R[0]; r = set().union(*R[1:])
            else:
                r = set().union(*R)
        elif self.vmem:
            if "load" in op and not self.ldsdma:
                w = R[0]; r = set().union(*R[1:])
            elif op.startswith("global_store"):
                r = set().union(*R); self.stdata = R[1]
            else:
                r = set().union(*R)
                if "store" in op or "atomic" in op: self.stdata = R[0]
            if not re.search(r"x3|x4", op): self.stdata = set()
        elif self.salu:
            if op.startswith(("s_cmp", "s_waitcnt", "s_branch", "s_cbranch", "s_barrier", "s_nop", "s_endpgm", "s_setprio", "s_sleep", "s_setpc")):
                r = set().union(*R) if R else set()
            else:
                w = R[0] if R else set(); r = set().union(*R[1:]) if len(R) > 1 else set()
                if "saveexec" in op: w = w | {("s", "exec")}
        self.w = w; self.r = r
        self.states = 0 if (self.label or self.directive or not op) else 1
        if op == "s_nop": self.states = int(ops[0], 0) + 1
        self.passes = 8 if "32x32" in op else 4

def need(prod, cons):
    n = 0
    pv = {x for x in prod.w if x[0] in "va"}
    ps = {x for x in prod.w if x[0] == "s"}
    if prod.valu:
        if cons.mfma and pv & cons.r: n = max(n, 2)
        if cons.valu and cons.dpp and pv & cons.r: n = max(n, 2)
        if cons.perml and pv & cons.r: n = max(n, 2)
        if cons.rdlane and pv & cons.r: n = max(n, 1)
        if prod.op.startswith('v_dot') and pv & (cons.r | cons.w) and cons.op != prod.op: n = max(n, 3)
        if prod.trans and cons.valu and not cons.trans and pv & cons.r: n = max(n, 1)
        if prod.trans and (cons.ds or cons.vmem) and pv & cons.r: n = max(n, 1)
        if ps:
            if cons.valu and ps & cons.r: n = max(n, 4 if cons.op.startswith(("v_readlane", "v_writelane")) else 2)
            if cons.vmem and ps & cons.r: n = max(n, 5)
            if cons.salu and ps & cons.r: n = max(n, 1)
            if cons.op.startswith("s_cbranch_vcc") and ("s", "vcc") in ps: n = max(n, 1)
    if prod.mfma:
        far = {4: 8, 8: 12}[prod.passes]
        if cons.mfma:
            if pv & cons.srcAB: n = max(n, far)
            if pv & cons.srcC and not (cons.srcC == pv and cons.passes == prod.passes and cons.op == prod.op): n = max(n, far - 2)
            if pv & cons.w and cons.srcC != pv: n = max(n, far)
        elif (cons.valu or cons.ds or cons.vmem) and pv & (cons.r | cons.w): n = max(n, far)
        if cons.valu and prod.srcC & cons.w: n = max(n, {4: 3, 8: 7}[prod.passes])
    if prod.salu and ("s", "m0") in ps and cons.ldsdma: n = max(n, 1)
    if prod.stdata and (cons.valu or cons.mfma) and prod.stdata & cons.w: n = max(n, 2)
    if prod.stdata and (cons.ds or cons.vmem) and prod.stdata & cons.w: n = max(n, 1)
    return n

class Asm:
    def __init__(self):
        self.ins = []
        self.vm = []
        self.lg = []
        self.nnop = 0
    def __call__(self, s, tag=None, count=True):
        for l in s.strip("\n").split("\n"):
            l = l.strip()
            if not l: continue
            self._emit(Ins(l), tag, count)
    def _emit(self, I, tag, count):
        if I.states and I.op != "s_nop":
            dist = 0; pad = 0
            for P in reversed(self.ins):
                if dist >= 14: break
                if P.states:
                    pad = max(pad, need(P, I) - dist)
                    dist += P.states
            if pad > 0:
                self.ins.append(Ins(f"s_nop {pad-1}")); self.nnop += pad
        self.ins.append(I)
        if I.vmem and count: self.vm.append(tag)
        if I.ds and count: self.lg.append(tag)
    def vmwait(self, tag, extra=""):
        idx = max(i for i, t in enumerate(self.vm) if t == tag or t == ("mark", tag))
        n = sum(1 for t in self.vm[idx + 1:] if not isinstance(t, tuple))
        assert n <= 63, n
        self(f"s_waitcnt vmcnt({n})" + extra)
    def lgwait(self, tag):
        idx = max(i for i, t in enumerate(self.lg) if t == tag)
        n = len(self.lg) - idx - 1
        n = min(n, 15)
        self(f"s_waitcnt lgkmcnt({n})")
    def vm0(self):
        self("s_waitcnt vmcnt(0)")
    def lg0(self):
        self("s_waitcnt lgkmcnt(0)")
    def align8(self):
        self(".p2align 3, , 4") if False else None
    def text(self):
        out = []
        for I in self.ins:
            out.append(I.text if I.label else "    " + I.text)
        return "\n".join(out) + "\n"
```

```python
NAME = "gated_mix__compressed_kv_cla__dense_activation_silu__decode"
WS_BYTES = 256 << 20
STAMP_OFF = WS_BYTES - (1 << 20)

class Asm:
    def __init__(self):
        self.lines = []
        self.nlabel = 0
    def __call__(self, s):
        for l in s.strip("\n").split("\n"):
            self.lines.append("    " + l.strip() if not l.strip().endswith(":") else l.strip())
    def label(self, base="L"):
        self.nlabel += 1
        return f"{base}_{self.nlabel}"
    def text(self):
        return "\n".join(self.lines) + "\n"

def kernel_file(kernels, header_comment=""):
    out = []
    if header_comment:
        out += ["; " + l for l in header_comment.strip().split("\n")]
    if len(kernels) == 1 and kernels[0]["name"] == NAME + "_kernel":
        k = kernels[0]
        out.append(f"; @launch grid=({k['grid']},1,1) block=({k['block']},1,1) lds={k['lds']}")
    else:
        for k in kernels:
            out.append(f"; @launch kernel={k['name']} grid=({k['grid']},1,1) block=({k['block']},1,1) lds={k['lds']}")
    out.append('.amdgcn_target "amdgcn-amd-amdhsa--gfx950"')
    out.append(".text")
    seen = set()
    for k in kernels:
        if k["name"] in seen: continue
        seen.add(k["name"])
        out.append(f".globl {k['name']}")
        out.append(".p2align 8")
        out.append(f".type {k['name']},@function")
        out.append(f"{k['name']}:")
        out.append(k["body"].rstrip("\n"))
    out.append('.section .rodata,"a"')
    seen = set()
    for k in kernels:
        if k["name"] in seen: continue
        seen.add(k["name"])
        out.append(".p2align 6")
        out.append(f".amdhsa_kernel {k['name']}")
        out.append(f"  .amdhsa_next_free_vgpr {k.get('vgpr', 512)}")
        out.append(f"  .amdhsa_next_free_sgpr {k.get('sgpr', 102)}")
        out.append(f"  .amdhsa_accum_offset {k.get('accum', 256)}")
        out.append("  .amdhsa_group_segment_fixed_size 0")
        out.append("  .amdhsa_kernarg_size 104")
        out.append("  .amdhsa_user_sgpr_count 2")
        out.append("  .amdhsa_user_sgpr_kernarg_segment_ptr 1")
        out.append("  .amdhsa_system_sgpr_workgroup_id_x 1")
        if k.get("denorm"):
            out.append("  .amdhsa_float_denorm_mode_32 3")
        out.append(".end_amdhsa_kernel")
    return "\n".join(out) + "\n"
```

```python
import sys, math
from asm2 import *

POIS = -1
WS_Q = 0x0
WS_S = 0x40000
WS_A = 0x80000
WS_F = 0x100000
WS_P = 0x200000
SZ = dict(x=2048, ckv=16 << 20, wq=4 << 20, wuk=4 << 20, wuv=4 << 20, wo=4 << 20, w1=512 * 1792 * 2, w2=512 * 1792 * 2, gate=1024, out=2048, dbg=256, ws=WS_BYTES)
PTR = dict(x=4, ckv=6, wq=8, wuk=10, wuv=12, wo=14, w1=18, w2=20, gate=22, out=24, dbg=26, ws=28)
SPIN = 30000
ROW = 1056
A_ST1 = 0; A_ST2 = 64 * ROW; A_Q = 0; QROW = 1040; A_W1 = 33280; A_W2 = A_W1 + 16384
A_PB = 128 * ROW; A_MX = A_PB + 8192; A_LS = A_MX + 512; A_END = A_LS + 512
W_QX = 131072; XROW = 272; W_OX = W_QX + 8 * XROW; W_CX = W_OX + 4 * XROW; W_END = W_CX + 2 * XROW
LDS_BYTES = max(A_END, W_END)

class P:
    stamps = False
    nt_ckv = ""; nt_wq = ""; nt_wuk = ""; nt_wuv = ""; nt_wo = ""; nt_ffn = ""
    qw = 4
    pois_at = 8
    rot = False
    icpf = True
    q_first = "sc1"
    chk_at = 8

def v(a, n=1): return f"v{a}" if n == 1 else f"v[{a}:{a+n-1}]"
def ag(a, n=1): return f"a{a}" if n == 1 else f"a[{a}:{a+n-1}]"

def srd(a, d, name):
    p = PTR[name]
    a(f"s_mov_b32 s{d}, s{p}\ns_mov_b32 s{d+1}, s{p+1}\ns_mov_b32 s{d+2}, {SZ[name]}\ns_mov_b32 s{d+3}, 0x20000")

def stamp(a, i, prm):
    if prm.stamps: a(f"s_memrealtime s[{70+2*i}:{71+2*i}]")

def stamp_out(a, prm, nst):
    if not prm.stamps: return
    a(f"""
    s_mov_b64 exec, -1
    s_waitcnt lgkmcnt(0)
    s_lshl_b32 s30, s2, 2
    s_add_u32 s30, s30, s3
    s_lshl_b32 s30, s30, 6
    s_add_u32 s30, s30, {STAMP_OFF}
    v_mov_b32 v4, 0
    """)
    for i in range(nst):
        a(f"v_mov_b32 v5, s{70+2*i}")
        a(f"buffer_store_dword v5, v4, s[36:39], s30 offen offset:{4*i}")

def allreduce(a, op, x, t):
    for sh in (8, 4, 2, 1):
        a(f"{op}_dpp v{x}, v{x}, v{x} row_ror:{sh} row_mask:0xf bank_mask:0xf")
    a(f"v_mov_b32 v{t}, v{x}\nv_permlane16_swap_b32 v{x}, v{t}\n{op} v{x}, v{x}, v{t}")
    a(f"v_mov_b32 v{t}, v{x}\nv_permlane32_swap_b32 v{x}, v{t}\n{op} v{x}, v{x}, v{t}")

def maxchk(a, acc, regs):
    regs = list(regs)
    a(f"v_max3_u32 v{acc}, v{regs[0]}, v{regs[1]}, v{regs[2]}")
    i = 3
    while i + 1 < len(regs):
        a(f"v_max3_u32 v{acc}, v{acc}, v{regs[i]}, v{regs[i+1]}"); i += 2
    if i < len(regs): a(f"v_max_u32 v{acc}, v{acc}, v{regs[i]}")

MF = "v_mfma_f32_16x16x32_bf16"

def gen_wgt(a, prm):
    a("L_wgt:")
    a("""
    s_lshr_b32 s60, s31, 2
    s_lshl_b32 s60, s60, 3
    s_add_u32 s60, s60, s30
    s_and_b32 s61, s31, 3
    s_lshl_b32 s62, s60, 2
    s_add_u32 s62, s62, s61
    """)
    a("""
    v_lshrrev_b32 v4, 3, v2
    v_lshlrev_b32 v4, 10, v4
    v_lshl_add_u32 v4, v3, 6, v4
    v_lshlrev_b32 v5, 4, v2
    v_lshl_add_u32 v5, v3, 18, v5
    v_lshlrev_b32 v9, 4, v1
    v_mov_b32 v12, -1
    v_mov_b32 v13, -1
    v_mov_b32 v14, -1
    v_mov_b32 v15, -1
    """)
    a("s_waitcnt lgkmcnt(0)")
    srd(a, 36, "ws"); srd(a, 32, "x"); srd(a, 40, "wq")
    a(f"""
    s_cmp_lg_u32 s3, 0
    s_cbranch_scc1 L_w_nopq
    v_lshlrev_b32 v10, 4, v2
    v_lshl_add_u32 v10, v3, 15, v10
    s_lshl_b32 s63, s62, 8
    s_mov_b32 exec_hi, 0
    """)
    a(f"buffer_store_dwordx4 v[12:15], v10, s[36:39], s63 offen sc1", count=False)
    a("s_mov_b64 exec, -1\nL_w_nopq:")
    a("s_lshl_b32 s63, s3, 8")
    for u in range(4): a(f"buffer_load_dwordx4 {v(16+4*u,4)}, v4, s[32:35], s63 offen offset:{16*u}", tag="x")
    a("s_lshl_b32 s64, s3, 20\ns_lshl_b32 s65, s60, 8\ns_add_u32 s64, s64, s65")
    a("s_lshl_b32 s66, s62, 15\ns_lshl_b32 s67, s3, 13\ns_add_u32 s66, s66, s67\ns_add_u32 s66, s66, %d" % WS_P)
    def poison_inbox():
        for t in range(8):
            if t == 4: a("s_add_u32 s66, s66, 4096")
            a(f"buffer_store_dwordx4 v[12:15], v9, s[36:39], s66 offen offset:{(t%4)*1024} sc1", tag="pois")
        a(f"s_lshl_b32 s66, s62, 10\ns_lshl_b32 s67, s3, 8\ns_add_u32 s66, s66, s67\ns_add_u32 s66, s66, {WS_S}\nv_lshlrev_b32 v10, 2, v1")
        a("buffer_store_dword v12, v10, s[36:39], s66 offen sc1", tag="pois")
    for t in range(32):
        a(f"buffer_load_dwordx4 {ag(4*t,4)}, v5, s[40:43], s64 offen {prm.nt_wq}", tag=f"wq{t}")
        a("s_add_u32 s64, s64, 8192")
        if t == 3:
            a("""
            v_and_b32 v6, 1, v2
            v_cmp_eq_u32 vcc, 1, v6
            v_mov_b32 v7, 0x0c0c0100
            v_mov_b32 v8, 0x01000c0c
            v_cndmask_b32 v10, v7, v8, vcc
            v_mov_b32 v7, 0x0c0c0302
            v_mov_b32 v8, 0x03020c0c
            v_cndmask_b32 v11, v7, v8, vcc
            v_bfe_u32 v6, v2, 1, 2
            v_mov_b32 v7, 0x0c0c0c0c
            """)
            for p in range(4):
                a(f"v_cmp_eq_u32 vcc, {p}, v6\nv_cndmask_b32 v{32+2*p}, v7, v10, vcc\nv_cndmask_b32 v{33+2*p}, v7, v11, vcc")
            srd(a, 44, "wuk"); srd(a, 48, "dbg")
        if t == prm.pois_at - 1:
            a("s_cmp_lg_u32 s3, 0\ns_cbranch_scc1 L_w_nosig")
            a.vmwait("x")
            a("s_and_b32 s63, s62, 1\ns_lshl_b32 s63, s63, 6\nv_mov_b32 v10, 1\ns_mov_b64 exec, 1")
            a("buffer_atomic_add v10, off, s[48:51], s63 sc1", count=False)
            a("s_mov_b64 exec, -1\nL_w_nosig:")
            poison_inbox()
    a("""
    v_lshrrev_b32 v6, 2, v2
    v_lshlrev_b32 v6, 3, v6
    v_and_b32 v7, 3, v2
    v_add_u32 v6, v6, v7
    v_lshlrev_b32 v6, 13, v6
    v_lshl_add_u32 v6, v3, 4, v6
    s_lshl_b32 s64, s61, 20
    s_lshl_b32 s63, s3, 18
    s_add_u32 s64, s64, s63
    s_add_u32 s64, s64, s65
    s_add_u32 s63, s64, 32768
    """)
    for T in range(2):
        for t in range(4):
            a(f"buffer_load_dwordx4 {v(40+16*T+4*t,4)}, v6, s[44:47], s{64 if T == 0 else 63} offen offset:{64*t} {prm.nt_wuk}", tag="wuk")
    stamp(a, 1, prm)
    a.vmwait("x")
    for t in range(32):
        for p in range(4):
            a(f"v_perm_b32 v{128+4*t+p}, v{16+(t>>1)}, v{16+(t>>1)}, v{32+2*p+(t&1)}")
    a(f"""
    v_lshrrev_b32 v7, 3, v2
    s_lshl_b32 s63, s3, 1
    v_add_u32 v7, s63, v7
    v_mul_u32_u24 v7, {XROW}, v7
    v_and_b32 v8, 7, v2
    v_lshl_add_u32 v7, v8, 1, v7
    v_lshl_add_u32 v7, v3, 6, v7
    v_add_u32 v7, {W_QX}, v7
    v_mul_u32_u24 v8, {XROW}, v8
    v_lshl_add_u32 v8, v3, 4, v8
    v_add_u32 v8, {W_QX}, v8
    """)
    for t in range(32):
        if t % 2 == 0 or t >= 24: a.vmwait(f"wq{t+1 if (t % 2 == 0 and t < 24) else t}")
        a(f"{MF} v[72:75], {ag(4*t,4)}, {v(128+4*t,4)}, {'0' if t == 0 else 'v[72:75]'}")
    stamp(a, 2, prm)
    a("v_cvt_pk_bf16_f32 v76, v72, v73\nv_cvt_pk_bf16_f32 v77, v74, v75")
    a("ds_write_b16 v7, v76\nds_write_b16_d16_hi v7, v76 offset:16\nds_write_b16 v7, v77 offset:32\nds_write_b16_d16_hi v7, v77 offset:48")
    a(f"""
    v_lshlrev_b32 v10, 15, v2
    v_lshl_add_u32 v10, v3, 4, v10
    s_lshl_b32 s63, s62, 8
    s_lshl_b32 s64, s3, 6
    s_add_u32 s63, s63, s64
    s_mov_b32 s64, {hex(struct_f32(128 ** -0.5 * math.log2(math.e)))}
    """)
    a("s_waitcnt vmcnt(0) lgkmcnt(0)\ns_barrier")
    for t in range(4): a(f"ds_read_b128 {v(84+4*t,4)}, v8 offset:{64*t}", tag=f"qb{t}")
    for t in range(4):
        a.lgwait(f"qb{t}")
        for T in range(2):
            a(f"{MF} {v(76+4*T,4)}, {v(40+16*T+4*t,4)}, {v(84+4*t,4)}, {'0' if t == 0 else v(76+4*T,4)}")
    for i in range(8): a(f"v_add_f32_dpp v{76+i}, v{76+i}, v{76+i} quad_perm:[2,3,0,1] row_mask:0xf bank_mask:0xf")
    for i in range(8): a(f"v_add_f32_dpp v{76+i}, v{76+i}, v{76+i} row_ror:4 row_mask:0xf bank_mask:0xf")
    for i in range(8): a(f"v_mul_f32 v{76+i}, s64, v{76+i}")
    for i in range(4): a(f"v_cvt_pk_bf16_f32 v{84+i}, v{76+2*i}, v{77+2*i}")
    a("s_mov_b32 s68, 0x00030003\ns_mov_b32 s69, 0x00030003\ns_mov_b64 exec, s[68:69]")
    a("buffer_store_dwordx4 v[84:87], v10, s[36:39], s63 offen sc1", tag="qst")
    a("s_mov_b64 exec, -1")
    stamp(a, 3, prm)
    srd(a, 40, "wuv"); srd(a, 44, "wo")
    a("""
    v_lshrrev_b32 v5, 2, v1
    v_lshlrev_b32 v5, 13, v5
    v_and_b32 v6, 3, v1
    v_lshl_add_u32 v5, v6, 4, v5
    s_lshl_b32 s63, s61, 20
    s_lshl_b32 s64, s3, 6
    s_add_u32 s63, s63, s64
    s_add_u32 s63, s63, s65
    s_lshl_b32 s66, s3, 15
    s_add_u32 m0, s66, 24576
    """)
    for q in range(8):
        a(f"buffer_load_dwordx4 v5, s[40:43], s63 offen {prm.nt_wuv} lds", tag="wuv")
        a("s_add_u32 m0, m0, 1024\ns_add_u32 s63, s63, 0x20000")
    a("""
    v_lshlrev_b32 v6, 1, v3
    v_xor_b32 v6, v6, v2
    v_xor_b32 v7, 8, v6
    v_lshlrev_b32 v6, 4, v6
    v_lshlrev_b32 v7, 4, v7
    v_lshl_add_u32 v6, v3, 10, v6
    v_lshl_add_u32 v7, v3, 10, v7
    s_lshl_b32 s63, s60, 17
    s_lshl_b32 s64, s3, 8
    s_add_u32 s63, s63, s64
    s_mov_b32 m0, s66
    s_nop 0
    """)
    def wo_dma(q):
        a(f"buffer_load_dwordx4 v{6 + ((q >> 1) & 1)}, s[44:47], s63 offen {prm.nt_wo} lds", tag=f"wo{q//8}")
        a("s_add_u32 m0, m0, 1024\ns_add_u32 s63, s63, 4096")
    for q in range(24): wo_dma(q)
    a("""
    v_lshrrev_b32 v8, 2, v2
    v_lshl_add_u32 v8, v3, 3, v8
    v_and_b32 v10, 3, v2
    v_lshlrev_b32 v11, 6, v8
    v_lshl_add_u32 v11, v10, 3, v11
    v_add_u32 v11, s66, v11
    """)
    a.vmwait("wuv")
    for T in range(2):
        for t in range(4):
            for e in range(2):
                a(f"ds_read_b64_tr_b16 {ag(128+16*T+4*t+2*e,2)}, v11 offset:{24576 + 2048*t + 256*e + 32*T}", tag="uvf")
            if T == 1 and t == 1: a.lgwait("uvf")
    a.lg0()
    for q in range(24, 32): wo_dma(q)
    a("""
    v_lshrrev_b32 v11, 2, v2
    v_and_b32 v16, 1, v3
    v_lshl_add_u32 v11, v16, 2, v11
    v_lshlrev_b32 v11, 1, v11
    v_lshrrev_b32 v16, 1, v10
    v_xor_b32 v11, v11, v16
    v_lshlrev_b32 v11, 4, v11
    v_and_b32 v16, 1, v10
    v_lshl_add_u32 v11, v16, 3, v11
    v_lshl_add_u32 v11, v8, 8, v11
    v_add_u32 v16, s66, v11
    """)
    for p in range(1, 8): a(f"v_xor_b32 v{16+p}, {32*p}, v16")
    for t in range(4):
        a.vmwait(f"wo{t}")
        for p in range(8):
            for e in range(2):
                a(f"ds_read_b64_tr_b16 {ag(16*p+4*t+2*e,2)}, v{16+p} offset:{8192*t + 1024*e}", tag="wof")
            if p == 3: a.lgwait("wof")
        a.lg0()
    stamp(a, 4, prm)
    a(f"""
    s_lshr_b32 s63, s3, 1
    s_lshl_b32 s63, s63, 9
    s_lshl_b32 s64, s62, 10
    s_add_u32 s63, s63, s64
    s_add_u32 s63, s63, {WS_S}
    v_lshlrev_b32 v4, 3, v1
    s_and_b32 s64, s3, 1
    s_lshl_b32 s64, s64, 7
    v_lshl_add_u32 v5, v3, 5, s64
    v_lshlrev_b32 v6, 4, v2
    v_lshl_add_u32 v6, v3, 11, v6
    s_lshl_b32 s64, s62, 15
    s_lshl_b32 s66, s3, 13
    s_add_u32 s64, s64, s66
    s_add_u32 s64, s64, {WS_P}
    s_mul_i32 s66, s3, {XROW}
    v_and_b32 v7, 7, v2
    v_lshlrev_b32 v7, 1, v7
    v_lshl_add_u32 v7, v3, 6, v7
    v_add_u32 v7, s66, v7
    v_add_u32 v7, {W_OX}, v7
    v_and_b32 v8, 3, v2
    v_mul_u32_u24 v8, {XROW}, v8
    v_lshl_add_u32 v8, v3, 4, v8
    v_add_u32 v8, {W_OX}, v8
    v_bfe_u32 v10, v2, 1, 1
    v_mul_u32_u24 v10, {XROW}, v10
    v_lshl_add_u32 v10, v3, 3, v10
    s_lshl_b32 s66, s3, 6
    v_add_u32 v10, s66, v10
    v_add_u32 v10, {W_CX}, v10
    v_and_b32 v11, 1, v2
    v_mul_u32_u24 v11, {XROW}, v11
    v_lshl_add_u32 v11, v3, 4, v11
    v_add_u32 v11, {W_CX}, v11
    v_and_b32 v12, 1, v2
    v_lshlrev_b32 v12, 18, v12
    v_lshl_add_u32 v12, v3, 4, v12
    s_lshl_b32 s66, s3, 16
    s_lshl_b32 s67, s62, 6
    s_add_u32 s66, s66, s67
    s_add_u32 s66, s66, {WS_A}
    s_mov_b32 s67, 0
    """)
    a("L_w_spoll:")
    a("buffer_load_dwordx2 v[24:25], v4, s[36:39], s63 offen sc1")
    a(f"""
    s_add_u32 s67, s67, 1
    s_waitcnt vmcnt(0)
    v_max_u32 v26, v24, v25
    v_cmp_eq_u32 vcc, -1, v26
    s_cmp_ge_u32 s67, {SPIN}
    s_cbranch_scc1 L_w_sdone
    s_cbranch_vccnz L_w_spoll
    L_w_sdone:
    """)
    stamp(a, 5, prm)
    a("v_mov_b32 v26, v24")
    allreduce(a, "v_max_f32", 26, 27)
    a("""
    v_sub_f32 v26, v24, v26
    v_exp_f32 v26, v26
    v_cvt_pk_bf16_f32 v28, v26, v26
    """)
    for u in range(8): a(f"ds_bpermute_b32 v{40+u}, v5, v28 offset:{4*u}", tag=f"bp{u}")
    a("v_lshlrev_b32 v26, 16, v28\nv_mul_f32 v26, v26, v25")
    allreduce(a, "v_add_f32", 26, 27)
    a("v_rcp_f32 v26, v26")
    a("s_mov_b32 s67, 0")
    a("L_w_bpoll:")
    for u in range(8): a(f"buffer_load_dwordx4 {v(160+4*u,4)}, v6, s[36:39], s64 offen offset:{256*u} sc1", tag=f"bk{u}")
    a.lg0()
    for u in range(8):
        for p in range(4): a(f"v_perm_b32 v{128+4*u+p}, v{40+u}, v{40+u}, v{32+2*p}")
    a("s_add_u32 s67, s67, 1")
    for u in range(8):
        a.vmwait(f"bk{u}")
        a(f"{MF} v[48:51], {v(160+4*u,4)}, {v(128+4*u,4)}, {'0' if u == 0 else 'v[48:51]'}")
        if u == 0: a("v_max3_u32 v27, v160, v161, v162\nv_max_u32 v27, v27, v163")
        else: a(f"v_max3_u32 v27, v27, v{160+4*u}, v{161+4*u}\nv_max3_u32 v27, v27, v{162+4*u}, v{163+4*u}")
    a(f"""
    v_cmp_eq_u32 vcc, -1, v27
    s_cmp_ge_u32 s67, {SPIN}
    s_cbranch_scc1 L_w_bdone
    s_cbranch_vccnz L_w_bpoll
    L_w_bdone:
    """)
    stamp(a, 6, prm)
    if prm.stamps: a("s_mov_b32 s88, s67")
    for i in range(4): a(f"v_mul_f32 v{48+i}, v26, v{48+i}")
    a("v_cvt_pk_bf16_f32 v52, v48, v49\nv_cvt_pk_bf16_f32 v53, v50, v51")
    a("ds_write_b16 v7, v52\nds_write_b16_d16_hi v7, v52 offset:16\nds_write_b16 v7, v53 offset:32\nds_write_b16_d16_hi v7, v53 offset:48")
    a("s_waitcnt lgkmcnt(0)\ns_barrier")
    for t in range(4): a(f"ds_read_b128 {v(84+4*t,4)}, v8 offset:{64*t}", tag=f"ob{t}")
    for t in range(4):
        a.lgwait(f"ob{t}")
        for T in range(2):
            a(f"{MF} {v(76+4*T,4)}, {ag(128+16*T+4*t,4)}, {v(84+4*t,4)}, {'0' if t == 0 else v(76+4*T,4)}")
    for i in range(8): a(f"v_add_f32_dpp v{76+i}, v{76+i}, v{76+i} quad_perm:[1,0,3,2] row_mask:0xf bank_mask:0xf")
    for i in range(4): a(f"v_cvt_pk_bf16_f32 v{52+i}, v{76+2*i}, v{77+2*i}")
    a("ds_write_b64 v10, v[52:53]\nds_write_b64 v10, v[54:55] offset:32")
    a("s_waitcnt lgkmcnt(0)\ns_barrier")
    for t in range(4): a(f"ds_read_b128 {v(84+4*t,4)}, v11 offset:{64*t}", tag=f"cb{t}")
    def st(p):
        a("s_mov_b64 exec, s[68:69]")
        a(f"buffer_store_dwordx4 {v(192+4*p,4)}, v12, s[36:39], s66 offen sc1")
        a("s_mov_b64 exec, -1\ns_add_u32 s66, s66, 8192")
    for pp in range(4):
        for t in range(4):
            if pp == 0: a.lgwait(f"cb{t}")
            for p in (2 * pp, 2 * pp + 1):
                a(f"{MF} {v(192+4*p,4)}, {ag(16*p+4*t,4)}, {v(84+4*t,4)}, {'0' if t == 0 else v(192+4*p,4)}")
            if pp > 0 and t == 2: st(2 * pp - 2)
            if pp > 0 and t == 3: st(2 * pp - 1)
    st(6); st(7)
    stamp(a, 7, prm)
    if prm.stamps:
        a("s_waitcnt vmcnt(0)"); stamp(a, 8, prm)
    stamp_out(a, prm, 10)
    a("s_endpgm")

def struct_f32(x):
    import struct
    return struct.unpack("<I", struct.pack("<f", x))[0]

def gen_att(a, prm):
    a.vm = []; a.lg = []
    a("""
    s_sub_u32 s61, s31, 16
    s_lshl_b32 s60, s61, 3
    s_add_u32 s60, s60, s30
    v_lshlrev_b32 v9, 4, v1
    v_mov_b32 v12, -1
    v_mov_b32 v13, -1
    v_mov_b32 v14, -1
    v_mov_b32 v15, -1
    s_lshl_b32 s62, s60, 17
    s_lshl_b32 s63, s3, 15
    s_add_u32 s62, s62, s63
    s_mul_i32 s63, s3, %d
    s_mov_b32 m0, s63
    s_waitcnt lgkmcnt(0)
    """ % (16 * ROW))
    srd(a, 40, "ckv")
    def row_dma(tag):
        a(f"buffer_load_dwordx4 v9, s[40:43], s62 offen {prm.nt_ckv} lds", tag=tag)
        a(f"s_add_u32 m0, m0, {ROW}\ns_add_u32 s62, s62, 1024")
    for i in range(16):
        row_dma("st1")
        if i == 3:
            srd(a, 36, "ws"); srd(a, 48, "dbg")
        if i == 7:
            a(f"""
            s_cmp_ge_u32 s60, 64
            s_cbranch_scc1 L_a_nopois
            s_lshl_b32 s64, s60, 13
            s_lshl_b32 s65, s3, 11
            s_add_u32 s64, s64, s65
            s_add_u32 s65, s64, {WS_F}
            s_add_u32 s64, s64, {WS_A}
            """)
            for sg in (64, 65):
                for o in (0, 1024): a(f"buffer_store_dwordx4 v[12:15], v9, s[36:39], s{sg} offen offset:{o} sc1", count=False)
            a("L_a_nopois:")
    a(f"s_add_u32 m0, s63, {A_ST2}")
    a("v_and_b32 v4, 1, v1\nv_lshlrev_b32 v4, 6, v4")
    for i in range(16):
        row_dma(f"st2_{i}")
        if i == prm.chk_at - 1:
            a("buffer_load_dword v10, v4, s[48:51], 0 offen sc1", tag="chk")
    stamp(a, 1, prm)
    a(f"""
    v_mul_u32_u24 v5, {ROW}, v2
    v_lshl_add_u32 v5, v3, 4, v5
    v_add_u32 v5, s63, v5
    v_add_u32 v6, {A_ST2}, v5
    v_lshrrev_b32 v7, 2, v2
    v_lshl_add_u32 v7, v3, 2, v7
    v_mul_u32_u24 v7, {ROW}, v7
    v_and_b32 v8, 3, v2
    v_lshl_add_u32 v7, v8, 3, v7
    s_lshl_b32 s64, s3, 8
    v_add_u32 v7, s64, v7
    v_add_u32 v8, {A_ST2}, v7
    """)
    a.vmwait("st1")
    stamp(a, 2, prm)
    for t in range(16):
        a(f"ds_read_b128 {ag(4*t,4)}, v5 offset:{64*t}", tag="k0")
        if t == 7: a.lgwait("k0")
    a("s_barrier")
    n = 0
    for pq in range(8):
        for u in range(4):
            a(f"ds_read_b64_tr_b16 {ag(128+16*pq+4*u,2)}, v7 offset:{16*u*ROW + 32*pq}", tag="v0")
            n += 1
            if n % 8 == 0: a.lgwait("v0")
    a("""
    s_cmp_ge_u32 s60, 64
    s_cbranch_scc1 L_a_nosig
    s_cmp_lg_u32 s3, 0
    s_cbranch_scc1 L_a_nosig
    s_and_b32 s64, s60, 1
    s_lshl_b32 s64, s64, 6
    s_add_u32 s64, s64, 128
    v_mov_b32 v11, 1
    s_mov_b64 exec, 1
    """)
    a("buffer_atomic_add v11, off, s[48:51], s64 sc1", count=False)
    a("s_mov_b64 exec, -1\nL_a_nosig:")
    a(f"""
    s_lshr_b32 s64, s60, 6
    s_lshl_b32 s64, s64, 15
    s_lshl_b32 s65, s3, 13
    s_add_u32 s64, s64, s65
    s_add_u32 s65, s64, 4096
    s_mul_i32 s66, s3, {8*QROW}
    v_add_u32 v11, s66, v9
    v_mul_u32_u24 v16, {QROW}, v2
    v_lshl_add_u32 v4, v3, 4, v16
    """)
    a("s_waitcnt lgkmcnt(0)\ns_barrier")
    a.vmwait("chk") if prm.chk_at > 16 - prm.qw else a.vmwait(f"st2_{15-prm.qw}")
    a(f"""
    s_mov_b32 s67, 0
    L_a_chk:
    v_cmp_ne_u32 vcc, 64, v10
    s_cbranch_vccz L_a_chkok
    s_add_u32 s67, s67, 1
    s_cmp_ge_u32 s67, {SPIN}
    s_cbranch_scc1 L_a_chkok
    v_and_b32 v16, 1, v1
    v_lshlrev_b32 v16, 6, v16
    """)
    a("buffer_load_dword v10, v16, s[48:51], 0 offen sc1", count=False)
    a("s_waitcnt vmcnt(0)\ns_branch L_a_chk\nL_a_chkok:")
    if prm.stamps: a("s_mov_b32 s92, s67")
    a.vmwait(f"st2_{15-prm.qw}")
    stamp(a, 3, prm)
    def q_dma(flags):
        a("s_mov_b32 m0, s66\ns_nop 0")
        for i in range(8):
            a(f"buffer_load_dwordx4 v9, s[36:39], s{64 + i//4} offen offset:{(i%4)*1024} {flags} lds", tag="q")
            if i < 7: a(f"s_add_u32 m0, m0, {QROW - 1024 if i != 3 else QROW + 3072}\ns_nop 0")
    q_dma(prm.q_first)
    a.vmwait("st2_15")
    stamp(a, 4, prm)
    for t in range(16):
        a(f"ds_read_b128 {ag(64+4*t,4)}, v6 offset:{64*t}", tag="k1")
        if t == 7: a.lgwait("k1")
    a("s_mov_b32 s67, 0")
    a("L_a_qchk:")
    a.vm0()
    for i in range(8): a(f"ds_read_b128 {v(128+4*i,4)}, v11 offset:{QROW*i}", tag=f"qo{i}")
    a("s_add_u32 s67, s67, 1")
    for i in range(8):
        a.lgwait(f"qo{i}")
        if i == 0: a("v_max3_u32 v16, v128, v129, v130\nv_max_u32 v16, v16, v131")
        else: a(f"v_max3_u32 v16, v16, v{128+4*i}, v{129+4*i}\nv_max3_u32 v16, v16, v{130+4*i}, v{131+4*i}")
    a(f"""
    v_cmp_eq_u32 vcc, -1, v16
    s_cbranch_vccz L_a_qok
    s_cmp_ge_u32 s67, {SPIN}
    s_cbranch_scc1 L_a_qok
    """)
    q_dma("sc1")
    a("s_branch L_a_qchk\nL_a_qok:")
    if prm.stamps: a("s_mov_b32 s98, s67")
    a("s_barrier")
    stamp(a, 5, prm)
    a.lg = []
    def qrd(t):
        for hg in range(2): a(f"ds_read_b128 {v(128+8*t+4*hg,4)}, v4 offset:{16*hg*QROW + 64*t}", tag=f"q{t}_{hg}")
    def vrd(k):
        pq, u = k // 4, k % 4
        a(f"ds_read_b64_tr_b16 {ag(128+16*pq+4*u+2,2)}, v8 offset:{16*u*ROW + 32*pq}", tag="v1")
    AH = 3
    for t in range(AH): qrd(t)
    for t in range(16):
        if t + AH < 16: qrd(t + AH)
        for hg in range(2):
            a.lgwait(f"q{t}_{hg}")
            for kt in range(2):
                acc = 16 + 8 * kt + 4 * hg
                a(f"{MF} {v(acc,4)}, {ag(64*kt+4*t,4)}, {v(128+8*t+4*hg,4)}, {'0' if t == 0 else v(acc,4)}")
            vrd(2 * t + hg)
        if t == 1:
            a("""
            s_lshr_b32 s52, s61, 2
            s_lshl_b32 s52, s52, 3
            s_add_u32 s52, s52, s30
            s_lshl_b32 s52, s52, 2
            s_and_b32 s53, s61, 3
            s_add_u32 s52, s52, s53
            """)
            srd(a, 40, "w1"); srd(a, 44, "w2")
        if t == 2:
            a(f"""
            v_lshrrev_b32 v10, 1, v1
            v_mul_u32_u24 v10, 3584, v10
            v_and_b32 v11, 1, v1
            v_lshl_add_u32 v10, v11, 4, v10
            s_lshl_b32 s53, s52, 5
            s_mul_i32 s54, s3, {4*32*3584}
            s_add_u32 s53, s53, s54
            s_lshl_b32 s54, s52, 14
            s_lshl_b32 s55, s3, 12
            s_add_u32 s54, s54, s55
            s_add_u32 s55, s55, {A_W1}
            s_mul_i32 s56, s3, {4*ROW}
            s_add_u32 s56, s56, {A_W2}
            """)
        if t == 3:
            a("s_cmp_ge_u32 s52, 112\ns_cbranch_scc1 L_a_noffn1\ns_mov_b32 m0, s55\ns_nop 0")
            for q in range(4):
                a(f"buffer_load_dwordx4 v10, s[40:43], s53 offen {prm.nt_ffn} lds", count=False)
                a(f"s_add_u32 m0, m0, 1024\ns_add_u32 s53, s53, {32*3584}")
            a("s_mov_b32 m0, s56\ns_nop 0")
            for q in range(4):
                a(f"buffer_load_dwordx4 v9, s[44:47], s54 offen offset:{1024*q} {prm.nt_ffn} lds", count=False)
                a(f"s_add_u32 m0, m0, {ROW-1024}\ns_nop 0")
            a("L_a_noffn1:")
        if t == 5:
            a(f"""
            v_and_b32 v10, 31, v1
            v_lshlrev_b32 v11, 4, v10
            v_add_u32 v11, {A_MX}, v11
            s_lshl_b32 s57, s3, 2
            v_add_u32 v12, s57, v11
            v_lshlrev_b32 v13, 4, v2
            v_add_u32 v13, {A_MX}, v13
            s_lshl_b32 s57, s3, 11
            s_add_u32 s57, s57, {A_PB}
            v_add_u32 v14, s57, v9
            v_add_u32 v15, {A_PB}, v9
            """)
        if t == 7:
            a(f"""
            v_lshlrev_b32 v5, 12, v10
            s_lshl_b32 s57, s3, 10
            s_lshl_b32 s58, s60, 3
            s_add_u32 s57, s57, s58
            s_add_u32 s57, s57, {WS_S}
            v_and_b32 v6, 1, v3
            v_lshlrev_b32 v6, 5, v6
            v_lshrrev_b32 v7, 1, v3
            v_lshl_add_u32 v6, v7, 4, v6
            v_lshl_add_u32 v6, v2, 17, v6
            s_lshl_b32 s58, s3, 15
            s_lshl_b32 s59, s60, 8
            s_add_u32 s58, s58, s59
            s_add_u32 s58, s58, {WS_P}
            s_add_u32 s59, s58, {16 << 17}
            v_and_b32 v7, 1, v3
            """)
    stamp(a, 6, prm)
    S = lambda kt, hg, r: 16 + 8 * kt + 4 * hg + r
    for hg in range(2):
        a(f"v_max3_f32 v{32+hg}, v{S(0,hg,0)}, v{S(0,hg,1)}, v{S(0,hg,2)}")
    for hg in range(2):
        a(f"v_max3_f32 v{32+hg}, v{32+hg}, v{S(0,hg,3)}, v{S(1,hg,0)}")
    for hg in range(2):
        a(f"v_max3_f32 v{32+hg}, v{32+hg}, v{S(1,hg,1)}, v{S(1,hg,2)}")
    for hg in range(2):
        a(f"v_max_f32 v{32+hg}, v{32+hg}, v{S(1,hg,3)}")
    a("""
    v_permlane16_swap_b32 v32, v33
    v_max_f32 v32, v32, v33
    v_mov_b32 v33, v32
    v_permlane32_swap_b32 v32, v33
    v_max_f32 v32, v32, v33
    ds_write_b32 v12, v32
    s_waitcnt lgkmcnt(0)
    s_barrier
    ds_read_b128 v[32:35], v13
    ds_read_b128 v[36:39], v13 offset:256
    v_cmp_eq_u32 vcc, 1, v7
    s_waitcnt lgkmcnt(1)
    v_max3_f32 v32, v32, v33, v34
    v_max_f32 v32, v32, v35
    s_waitcnt lgkmcnt(0)
    v_max3_f32 v36, v36, v37, v38
    v_max_f32 v33, v36, v39
    """)
    for hg in range(2):
        for kt in range(2):
            for r in range(4): a(f"v_sub_f32 v{S(kt,hg,r)}, v{S(kt,hg,r)}, v{32+hg}")
        for kt in range(2):
            for r in range(4): a(f"v_exp_f32 v{S(kt,hg,r)}, v{S(kt,hg,r)}")
        if hg == 0: a("v_cndmask_b32 v44, v32, v33, vcc")
        for kt in range(2):
            for r2 in range(2): a(f"v_cvt_pk_bf16_f32 v{36+4*hg+2*kt+r2}, v{S(kt,hg,2*r2)}, v{S(kt,hg,2*r2+1)}")
        a(f"ds_write_b128 v14, {v(36+4*hg,4)} offset:{1024*hg}")
    for hg in range(2):
        a(f"v_add_f32 v{34+hg}, v{S(0,hg,0)}, v{S(0,hg,1)}")
    for (kt, r) in [(0, 2), (0, 3), (1, 0), (1, 1), (1, 2), (1, 3)]:
        for hg in range(2): a(f"v_add_f32 v{34+hg}, v{34+hg}, v{S(kt,hg,r)}")
    a("""
    v_permlane16_swap_b32 v34, v35
    v_add_f32 v34, v34, v35
    v_mov_b32 v35, v34
    v_permlane32_swap_b32 v34, v35
    v_add_f32 v34, v34, v35
    ds_write_b32 v12, v34 offset:512
    s_waitcnt lgkmcnt(0)
    s_barrier
    """)
    a.lg = []
    for u in range(4):
        for hg in range(2): a(f"ds_read_b128 {v(128+8*u+4*hg,4)}, v15 offset:{(2*u+hg)*1024}", tag=f"p{u}_{hg}")
    a("ds_read_b128 v[32:35], v11 offset:512", tag="ls")
    stamp(a, 7, prm)
    O = lambda pq, hg: 64 + 8 * pq + 4 * hg
    def cvt_store(pp, hg):
        b = 48 + 4 * hg + 8 * (pp & 1)
        for k, pq in enumerate((2 * pp, 2 * pp + 1)):
            a(f"v_cvt_pk_bf16_f32 v{b+2*k}, v{O(pq,hg)}, v{O(pq,hg)+1}\nv_cvt_pk_bf16_f32 v{b+2*k+1}, v{O(pq,hg)+2}, v{O(pq,hg)+3}")
        return b
    def swap_store(pp, hg):
        b = 48 + 4 * hg + 8 * (pp & 1)
        a(f"v_permlane16_swap_b32 v{b}, v{b+2}\nv_permlane16_swap_b32 v{b+1}, v{b+3}")
        a(f"buffer_store_dwordx4 {v(b,4)}, v6, s[36:39], s{58+hg} offen offset:{64*pp} sc1", tag="pst")
    for pp in range(4):
        for u in range(4):
            for hg in range(2):
                if pp == 0: a.lgwait(f"p{u}_{hg}")
                for pq in (2 * pp, 2 * pp + 1):
                    a(f"{MF} {v(O(pq,hg),4)}, {ag(128+16*pq+4*u,4)}, {v(128+8*u+4*hg,4)}, {'0' if u == 0 else v(O(pq,hg),4)}")
                if pp > 0 and u == 1: cvt_store(pp - 1, hg)
                if pp > 0 and u == 2: swap_store(pp - 1, hg)
            if pp == 0 and u == 3:
                a.lgwait("ls")
                a("v_add_f32 v32, v32, v33\nv_add_f32 v34, v34, v35\nv_add_f32 v45, v32, v34\ns_mov_b32 exec_hi, 0")
                a("buffer_store_dwordx2 v[44:45], v5, s[36:39], s57 offen sc1", tag="sst")
                a("s_mov_b64 exec, -1")
    for hg in range(2): cvt_store(3, hg)
    for hg in range(2): swap_store(3, hg)
    stamp(a, 8, prm)
    a("s_cmp_ge_u32 s52, 112\ns_cbranch_scc1 L_a_noffn2")
    srd(a, 32, "x")
    a(f"""
    v_and_b32 v4, 1, v2
    v_lshlrev_b32 v4, 10, v4
    v_lshl_add_u32 v4, v3, 4, v4
    v_and_b32 v5, 1, v1
    v_lshlrev_b32 v5, 6, v5
    """)
    for t in range(16): a(f"buffer_load_dwordx4 {v(128+4*t,4)}, v4, s[32:35], 0 offen offset:{64*t}", tag="xf")
    a("buffer_load_dword v10, v5, s[48:51], 0 offen offset:128 sc1", tag="chkA")
    a(f"""
    v_lshrrev_b32 v6, 2, v2
    v_and_b32 v7, 3, v2
    v_lshl_add_u32 v8, v3, 3, v6
    v_lshlrev_b32 v8, 5, v8
    v_lshl_add_u32 v8, v7, 3, v8
    v_add_u32 v8, {A_W1}, v8
    v_lshl_add_u32 v11, v3, 2, v6
    v_mul_u32_u24 v11, {ROW}, v11
    v_lshl_add_u32 v11, v7, 3, v11
    s_lshl_b32 s53, s3, 8
    s_add_u32 s53, s53, {A_W2}
    v_add_u32 v11, s53, v11
    v_and_b32 v12, 1, v2
    v_lshlrev_b32 v12, 18, v12
    v_lshl_add_u32 v12, v3, 4, v12
    s_lshl_b32 s53, s3, 16
    s_lshl_b32 s54, s52, 6
    s_add_u32 s53, s53, s54
    s_add_u32 s53, s53, {WS_F}
    """)
    a.vmwait("sst")
    a("s_barrier")
    a.lg = []
    for t in range(16):
        for e in range(2): a(f"ds_read_b64_tr_b16 {v(192+4*t+2*e,2)}, v8 offset:{1024*t + 128*e}", tag=f"w1_{t}")
        if t % 4 == 3: a.lgwait(f"w1_{t-2}")
    for p in range(8): a(f"ds_read_b64_tr_b16 {v(64+2*p,2)}, v11 offset:{32*p}", tag="w2")
    a.vmwait("xf"); a.lg0()
    for t in range(16):
        a(f"{MF} v[16:19], {v(192+4*t,4)}, {v(128+4*t,4)}, {'0' if t == 0 else 'v[16:19]'}")
    a("v_cvt_pk_bf16_f32 v20, v16, v17\nv_cvt_pk_bf16_f32 v21, v18, v19")
    a("v_lshlrev_b32 v16, 16, v20\nv_and_b32 v17, 0xffff0000, v20\nv_lshlrev_b32 v18, 16, v21\nv_and_b32 v19, 0xffff0000, v21")
    a(f"s_mov_b32 s54, {hex(struct_f32(-math.log2(math.e)))}")
    for i in range(4): a(f"v_mul_f32 v{20+i}, s54, v{16+i}")
    for i in range(4): a(f"v_exp_f32 v{20+i}, v{20+i}")
    for i in range(4): a(f"v_add_f32 v{20+i}, 1.0, v{20+i}")
    for i in range(4): a(f"v_rcp_f32 v{20+i}, v{20+i}")
    for i in range(4): a(f"v_mul_f32 v{16+i}, v{16+i}, v{20+i}")
    a("v_cvt_pk_bf16_f32 v20, v16, v17\nv_cvt_pk_bf16_f32 v21, v18, v19")
    for p in range(8): a(f"v_mfma_f32_16x16x16_bf16 {v(96+4*p,4)}, {v(64+2*p,2)}, v[20:21], 0")
    a(f"""
    s_mov_b32 s67, 0
    s_waitcnt vmcnt(0)
    L_a_chkA:
    v_cmp_ne_u32 vcc, 32, v10
    s_cbranch_vccz L_a_chkAok
    s_add_u32 s67, s67, 1
    s_cmp_ge_u32 s67, {SPIN}
    s_cbranch_scc1 L_a_chkAok
    """)
    a("buffer_load_dword v10, v5, s[48:51], 0 offen offset:128 sc1")
    a("s_waitcnt vmcnt(0)\ns_branch L_a_chkA\nL_a_chkAok:")
    a("s_mov_b32 s68, 0x00030003\ns_mov_b32 s69, 0x00030003\ns_mov_b64 exec, s[68:69]")
    for p in range(8):
        a(f"buffer_store_dwordx4 {v(96+4*p,4)}, v12, s[36:39], s53 offen sc1")
        a("s_add_u32 s53, s53, 8192")
    a("s_mov_b64 exec, -1")
    a("L_a_noffn2:")
    stamp(a, 9, prm)
    a("s_cmp_ge_u32 s60, 64\ns_cbranch_scc1 L_a_end\ns_cmp_lg_u32 s3, 0\ns_cbranch_scc1 L_a_end")
    srd(a, 32, "x"); srd(a, 40, "gate"); srd(a, 44, "out")
    a("s_lshr_b32 s53, s60, 5\ns_lshl_b32 s53, s53, 10")
    a("buffer_load_dwordx4 v[16:19], v9, s[32:35], s53 offen\nbuffer_load_dwordx4 v[20:23], v9, s[40:43], 0 offen")
    a(f"""
    s_lshl_b32 s54, s60, 13
    s_add_u32 s55, s54, {WS_F}
    s_add_u32 s56, s55, 4096
    s_add_u32 s54, s54, {WS_A}
    s_add_u32 s57, s54, 4096
    v_and_b32 v4, 3, v2
    v_lshl_add_u32 v4, v4, 2, v3
    v_lshlrev_b32 v4, 1, v4
    s_lshl_b32 s58, s60, 5
    s_waitcnt vmcnt(0)
    """)
    for i in range(4):
        a(f"""
        v_lshlrev_b32 v24, 16, v{16+i}
        v_and_b32 v25, 0xffff0000, v{16+i}
        v_lshlrev_b32 v26, 16, v{20+i}
        v_and_b32 v27, 0xffff0000, v{20+i}
        v_mul_f32 v24, v24, v26
        v_mul_f32 v25, v25, v27
        v_cvt_pk_bf16_f32 v24, v24, v25
        v_lshlrev_b32 v25, 16, v24
        v_and_b32 v24, 0xffff0000, v24
        """)
        a("v_add_f32 v28, v24, v25" if i == 0 else "v_add_f32 v28, v28, v24\nv_add_f32 v28, v28, v25")
    allreduce(a, "v_add_f32", 28, 29)
    a(f"""
    v_cvt_pk_bf16_f32 v28, v28, v28
    v_and_b32 v28, 0xffff0000, v28
    s_mov_b32 s59, {hex(struct_f32(-math.log2(math.e)))}
    v_mul_f32 v28, s59, v28
    v_exp_f32 v28, v28
    v_add_f32 v28, 1.0, v28
    v_rcp_f32 v28, v28
    v_cvt_pk_bf16_f32 v28, v28, v28
    v_and_b32 v28, 0xffff0000, v28
    v_sub_f32 v29, 1.0, v28
    v_cvt_pk_bf16_f32 v29, v29, v29
    v_and_b32 v29, 0xffff0000, v29
    """)
    def gather(lab, nld, s0, s1, dst):
        a(f"s_mov_b32 s67, 0\n{lab}:")
        for u in range(nld): a(f"buffer_load_dwordx4 {v(64+4*u,4)}, v9, s[36:39], s{s0 if u < 4 else s1} offen offset:{1024*(u%4)} sc1", tag=f"{lab}{u}")
        a("s_add_u32 s67, s67, 1")
        for u in range(nld):
            a.vmwait(f"{lab}{u}")
            if u == 0: a("v_max3_u32 v30, v64, v65, v66\nv_max_u32 v30, v30, v67")
            else: a(f"v_max3_u32 v30, v30, v{64+4*u}, v{65+4*u}\nv_max3_u32 v30, v30, v{66+4*u}, v{67+4*u}")
            if u == 1:
                for i in range(4): a(f"v_add_f32 v{32+i}, v{64+i}, v{68+i}")
            if u > 1:
                for i in range(4): a(f"v_add_f32 v{32+i}, v{32+i}, v{64+4*u+i}")
        a(f"""
        v_cmp_eq_u32 vcc, -1, v30
        s_cmp_ge_u32 s67, {SPIN}
        s_cbranch_scc1 {lab}_ok
        s_cbranch_vccnz {lab}
        {lab}_ok:
        """)
        for sh in (4, 8):
            for i in range(4): a(f"v_add_f32_dpp v{32+i}, v{32+i}, v{32+i} row_ror:{sh} row_mask:0xf bank_mask:0xf")
        a(f"""
        v_permlane16_swap_b32 v32, v33
        v_permlane16_swap_b32 v34, v35
        v_add_f32 v32, v32, v33
        v_add_f32 v34, v34, v35
        v_permlane32_swap_b32 v32, v34
        v_add_f32 v32, v32, v34
        v_cvt_pk_bf16_f32 v{dst}, v32, v32
        v_and_b32 v{dst}, 0xffff0000, v{dst}
        """)
    gather("L_f_b", 7, 55, 56, 36)
    a("v_mul_f32 v36, v29, v36\nv_cvt_pk_bf16_f32 v36, v36, v36\nv_and_b32 v36, 0xffff0000, v36")
    stamp(a, 10, prm)
    gather("L_f_a", 8, 54, 57, 37)
    if prm.stamps: a("s_mov_b32 s94, s67")
    a("""
    v_mul_f32 v37, v28, v37
    v_cvt_pk_bf16_f32 v37, v37, v37
    v_and_b32 v37, 0xffff0000, v37
    v_add_f32 v37, v37, v36
    v_cvt_pk_bf16_f32 v37, v37, v37
    s_mov_b32 s68, 0x000f000f
    s_mov_b32 s69, 0x000f000f
    s_mov_b64 exec, s[68:69]
    """)
    a("buffer_store_short v37, v4, s[44:47], s58 offen")
    a("L_a_end:")
    if prm.stamps:
        a("s_memrealtime s[96:97]")
    stamp_out(a, prm, 15)
    a("s_endpgm")

def gen(prm):
    a = Asm()
    a("s_cmp_ge_u32 s2, 256\ns_cbranch_scc1 L_exit")
    stamp(a, 0, prm)
    a("""
    s_load_dwordx16 s[4:19], s[0:1], 0
    s_load_dwordx8 s[20:27], s[0:1], 64
    s_load_dwordx2 s[28:29], s[0:1], 96
    v_lshrrev_b32 v1, 6, v0
    s_and_b32 s30, s2, 7
    v_readfirstlane_b32 s3, v1
    s_lshr_b32 s31, s2, 3
    v_and_b32 v1, 63, v0
    v_and_b32 v2, 15, v0
    v_bfe_u32 v3, v0, 4, 2
    """)
    if prm.stamps:
        for i in range(1, 15): a(f"s_mov_b32 s{70+2*i}, 0")
    if prm.icpf:
        a("""
        s_and_b32 s32, s31, 7
        s_or_b32 s32, s32, s3
        s_cmp_lg_u32 s32, 0
        s_cbranch_scc1 L_nopf
        s_getpc_b64 s[32:33]
        L_pc:
        s_mov_b32 s34, L_exit-L_pc
        v_lshlrev_b32 v4, 7, v1
        """)
        for k in range(2):
            a("v_min_u32 v5, s34, v4")
            a("global_load_dword v127, v5, s[32:33]", count=False)
            a("v_add_u32 v4, 0x2000, v4")
        a("L_nopf:")
    a("s_cmp_lt_u32 s31, 16\ns_cbranch_scc1 L_wgt")
    gen_att(a, prm)
    a.vm = []; a.lg = []
    gen_wgt(a, prm)
    a("L_exit:\ns_endpgm")
    return a

HEADER = """Fused decode step: latent-KV attention (weights absorbed) + SiLU FFN + sigmoid gate.
One persistent launch, 256 workgroups: 128 weight-side workgroups and 128 attention workgroups."""

def emit(prm, path):
    a = gen(prm)
    txt = kernel_file([dict(name=NAME + "_kernel", body=a.text(), grid=256, block=256, lds=LDS_BYTES, vgpr=512, accum=256, sgpr=102)], HEADER)
    open(path, "w").write(txt)
    return a

if __name__ == "__main__":
    prm = P()
    out = sys.argv[1] if len(sys.argv) > 1 else "k.s"
    for kv in sys.argv[2:]:
        k, val = kv.split("=", 1)
        cur = getattr(prm, k)
        setattr(prm, k, (val == "1") if isinstance(cur, bool) else type(cur)(val.replace("_", " ")) if isinstance(cur, str) else int(val))
    a = emit(prm, out)
    print("instrs", len(a.ins), "nops", a.nnop, "lds", LDS_BYTES)
```

```python
import sys, math
from asm2 import *

POIS = -1
WS_Q = 0x0
WS_S = 0x40000
WS_A = 0x80000
WS_F = 0x100000
WS_P = 0x200000
SZ = dict(x=2048, ckv=16 << 20, wq=4 << 20, wuk=4 << 20, wuv=4 << 20, wo=4 << 20, w1=512 * 1792 * 2, w2=512 * 1792 * 2, gate=1024, out=2048, dbg=256, ws=WS_BYTES)
PTR = dict(x=4, ckv=6, wq=8, wuk=10, wuv=12, wo=14, w1=18, w2=20, gate=22, out=24, dbg=26, ws=28)
SPIN = 30000
ROW = 1056
A_ST1 = 0; A_ST2 = 64 * ROW; A_Q = 0; QROW = 1040; A_W1 = 33280; A_W2 = A_W1 + 16384
A_PB = 128 * ROW; A_MX = A_PB + 8192; A_LS = A_MX + 512; A_END = A_LS + 512
W_QX = 131072; XROW = 272; W_OX = W_QX + 8 * XROW; W_CX = W_OX + 4 * XROW; W_END = W_CX + 2 * XROW
LDS_BYTES = max(A_END, W_END)

class P:
    stamps = False
    nt_ckv = ""; nt_wq = ""; nt_wuk = ""; nt_wuv = ""; nt_wo = ""; nt_ffn = ""
    qw = 4
    pois_at = 8
    rot = False
    icpf = True
    q_first = "sc1"
    hold = 0
    chk_at = 8

def v(a, n=1): return f"v{a}" if n == 1 else f"v[{a}:{a+n-1}]"
def ag(a, n=1): return f"a{a}" if n == 1 else f"a[{a}:{a+n-1}]"

def srd(a, d, name):
    p = PTR[name]
    a(f"s_mov_b32 s{d}, s{p}\ns_mov_b32 s{d+1}, s{p+1}\ns_mov_b32 s{d+2}, {SZ[name]}\ns_mov_b32 s{d+3}, 0x20000")

def stamp(a, i, prm):
    if prm.stamps: a(f"s_memrealtime s[{70+2*i}:{71+2*i}]")

def stamp_out(a, prm, nst):
    if not prm.stamps: return
    a(f"""
    s_mov_b64 exec, -1
    s_waitcnt lgkmcnt(0)
    s_lshl_b32 s30, s2, 2
    s_add_u32 s30, s30, s3
    s_lshl_b32 s30, s30, 6
    s_add_u32 s30, s30, {STAMP_OFF}
    v_mov_b32 v4, 0
    """)
    for i in range(nst):
        a(f"v_mov_b32 v5, s{70+2*i}")
        a(f"buffer_store_dword v5, v4, s[36:39], s30 offen offset:{4*i}")

def allreduce(a, op, x, t):
    for sh in (8, 4, 2, 1):
        a(f"{op}_dpp v{x}, v{x}, v{x} row_ror:{sh} row_mask:0xf bank_mask:0xf")
    a(f"v_mov_b32 v{t}, v{x}\nv_permlane16_swap_b32 v{x}, v{t}\n{op} v{x}, v{x}, v{t}")
    a(f"v_mov_b32 v{t}, v{x}\nv_permlane32_swap_b32 v{x}, v{t}\n{op} v{x}, v{x}, v{t}")

def maxchk(a, acc, regs):
    regs = list(regs)
    a(f"v_max3_u32 v{acc}, v{regs[0]}, v{regs[1]}, v{regs[2]}")
    i = 3
    while i + 1 < len(regs):
        a(f"v_max3_u32 v{acc}, v{acc}, v{regs[i]}, v{regs[i+1]}"); i += 2
    if i < len(regs): a(f"v_max_u32 v{acc}, v{acc}, v{regs[i]}")

MF = "v_mfma_f32_16x16x32_bf16"

def gen_wgt(a, prm):
    a("L_wgt:")
    a("""
    s_lshr_b32 s60, s31, 2
    s_lshl_b32 s60, s60, 3
    s_add_u32 s60, s60, s30
    s_and_b32 s61, s31, 3
    s_lshl_b32 s62, s60, 2
    s_add_u32 s62, s62, s61
    """)
    a("""
    v_lshrrev_b32 v4, 3, v2
    v_lshlrev_b32 v4, 10, v4
    v_lshl_add_u32 v4, v3, 6, v4
    v_lshlrev_b32 v5, 4, v2
    v_lshl_add_u32 v5, v3, 18, v5
    v_lshlrev_b32 v9, 4, v1
    v_mov_b32 v12, -1
    v_mov_b32 v13, -1
    v_mov_b32 v14, -1
    v_mov_b32 v15, -1
    """)
    a("s_waitcnt lgkmcnt(0)")
    srd(a, 36, "ws"); srd(a, 32, "x"); srd(a, 40, "wq")
    a(f"""
    s_cmp_lg_u32 s3, 0
    s_cbranch_scc1 L_w_nopq
    v_lshlrev_b32 v10, 4, v2
    v_lshl_add_u32 v10, v3, 15, v10
    s_lshl_b32 s63, s62, 8
    s_mov_b32 exec_hi, 0
    """)
    a(f"buffer_store_dwordx4 v[12:15], v10, s[36:39], s63 offen sc1", count=False)
    a("s_mov_b64 exec, -1\nL_w_nopq:")
    a("s_lshl_b32 s63, s3, 8")
    for u in range(4): a(f"buffer_load_dwordx4 {v(16+4*u,4)}, v4, s[32:35], s63 offen offset:{16*u}", tag="x")
    a("s_lshl_b32 s64, s3, 20\ns_lshl_b32 s65, s60, 8\ns_add_u32 s64, s64, s65")
    a("s_lshl_b32 s66, s62, 15\ns_lshl_b32 s67, s3, 13\ns_add_u32 s66, s66, s67\ns_add_u32 s66, s66, %d" % WS_P)
    def poison_inbox():
        for t in range(8):
            if t == 4: a("s_add_u32 s66, s66, 4096")
            a(f"buffer_store_dwordx4 v[12:15], v9, s[36:39], s66 offen offset:{(t%4)*1024} sc1", tag="pois")
        a(f"s_lshl_b32 s66, s62, 10\ns_lshl_b32 s67, s3, 8\ns_add_u32 s66, s66, s67\ns_add_u32 s66, s66, {WS_S}\nv_lshlrev_b32 v10, 2, v1")
        a("buffer_store_dword v12, v10, s[36:39], s66 offen sc1", tag="pois")
    for t in range(32):
        a(f"buffer_load_dwordx4 {ag(4*t,4)}, v5, s[40:43], s64 offen {prm.nt_wq}", tag=f"wq{t}")
        a("s_add_u32 s64, s64, 8192")
        if t == 3:
            a("""
            v_and_b32 v6, 1, v2
            v_cmp_eq_u32 vcc, 1, v6
            v_mov_b32 v7, 0x0c0c0100
            v_mov_b32 v8, 0x01000c0c
            v_cndmask_b32 v10, v7, v8, vcc
            v_mov_b32 v7, 0x0c0c0302
            v_mov_b32 v8, 0x03020c0c
            v_cndmask_b32 v11, v7, v8, vcc
            v_bfe_u32 v6, v2, 1, 2
            v_mov_b32 v7, 0x0c0c0c0c
            """)
            for p in range(4):
                a(f"v_cmp_eq_u32 vcc, {p}, v6\nv_cndmask_b32 v{32+2*p}, v7, v10, vcc\nv_cndmask_b32 v{33+2*p}, v7, v11, vcc")
            srd(a, 44, "wuk"); srd(a, 48, "dbg")
        if t == prm.pois_at - 1:
            a("s_cmp_lg_u32 s3, 0\ns_cbranch_scc1 L_w_nosig")
            a.vmwait("x")
            a("s_and_b32 s63, s62, 1\ns_lshl_b32 s63, s63, 6\nv_mov_b32 v10, 1\ns_mov_b64 exec, 1")
            a("buffer_atomic_add v10, off, s[48:51], s63 sc1", count=False)
            a("s_mov_b64 exec, -1\nL_w_nosig:")
            poison_inbox()
    a("""
    v_lshrrev_b32 v6, 2, v2
    v_lshlrev_b32 v6, 3, v6
    v_and_b32 v7, 3, v2
    v_add_u32 v6, v6, v7
    v_lshlrev_b32 v6, 13, v6
    v_lshl_add_u32 v6, v3, 4, v6
    s_lshl_b32 s64, s61, 20
    s_lshl_b32 s63, s3, 18
    s_add_u32 s64, s64, s63
    s_add_u32 s64, s64, s65
    s_add_u32 s63, s64, 32768
    """)
    for T in range(2):
        for t in range(4):
            a(f"buffer_load_dwordx4 {v(40+16*T+4*t,4)}, v6, s[44:47], s{64 if T == 0 else 63} offen offset:{64*t} {prm.nt_wuk}", tag="wuk")
    stamp(a, 1, prm)
    a.vmwait("x")
    for t in range(32):
        for p in range(4):
            a(f"v_perm_b32 v{128+4*t+p}, v{16+(t>>1)}, v{16+(t>>1)}, v{32+2*p+(t&1)}")
    a(f"""
    v_lshrrev_b32 v7, 3, v2
    s_lshl_b32 s63, s3, 1
    v_add_u32 v7, s63, v7
    v_mul_u32_u24 v7, {XROW}, v7
    v_and_b32 v8, 7, v2
    v_lshl_add_u32 v7, v8, 1, v7
    v_lshl_add_u32 v7, v3, 6, v7
    v_add_u32 v7, {W_QX}, v7
    v_mul_u32_u24 v8, {XROW}, v8
    v_lshl_add_u32 v8, v3, 4, v8
    v_add_u32 v8, {W_QX}, v8
    """)
    for t in range(32):
        if t % 2 == 0 or t >= 24: a.vmwait(f"wq{t+1 if (t % 2 == 0 and t < 24) else t}")
        a(f"{MF} v[72:75], {ag(4*t,4)}, {v(128+4*t,4)}, {'0' if t == 0 else 'v[72:75]'}")
    stamp(a, 2, prm)
    a("v_cvt_pk_bf16_f32 v76, v72, v73\nv_cvt_pk_bf16_f32 v77, v74, v75")
    a("ds_write_b16 v7, v76\nds_write_b16_d16_hi v7, v76 offset:16\nds_write_b16 v7, v77 offset:32\nds_write_b16_d16_hi v7, v77 offset:48")
    a(f"""
    v_lshlrev_b32 v10, 15, v2
    v_lshl_add_u32 v10, v3, 4, v10
    s_lshl_b32 s63, s62, 8
    s_lshl_b32 s64, s3, 6
    s_add_u32 s63, s63, s64
    s_mov_b32 s64, {hex(struct_f32(128 ** -0.5 * math.log2(math.e)))}
    """)
    a("s_waitcnt vmcnt(0) lgkmcnt(0)\ns_barrier")
    for t in range(4): a(f"ds_read_b128 {v(84+4*t,4)}, v8 offset:{64*t}", tag=f"qb{t}")
    for t in range(4):
        a.lgwait(f"qb{t}")
        for T in range(2):
            a(f"{MF} {v(76+4*T,4)}, {v(40+16*T+4*t,4)}, {v(84+4*t,4)}, {'0' if t == 0 else v(76+4*T,4)}")
    for i in range(8): a(f"v_add_f32_dpp v{76+i}, v{76+i}, v{76+i} quad_perm:[2,3,0,1] row_mask:0xf bank_mask:0xf")
    for i in range(8): a(f"v_add_f32_dpp v{76+i}, v{76+i}, v{76+i} row_ror:4 row_mask:0xf bank_mask:0xf")
    for i in range(8): a(f"v_mul_f32 v{76+i}, s64, v{76+i}")
    for i in range(4): a(f"v_cvt_pk_bf16_f32 v{84+i}, v{76+2*i}, v{77+2*i}")
    a("s_mov_b32 s68, 0x00030003\ns_mov_b32 s69, 0x00030003\ns_mov_b64 exec, s[68:69]")
    a("buffer_store_dwordx4 v[84:87], v10, s[36:39], s63 offen sc1", tag="qst")
    a("s_mov_b64 exec, -1")
    stamp(a, 3, prm)
    srd(a, 40, "wuv"); srd(a, 44, "wo")
    a("""
    v_lshrrev_b32 v5, 2, v1
    v_lshlrev_b32 v5, 13, v5
    v_and_b32 v6, 3, v1
    v_lshl_add_u32 v5, v6, 4, v5
    s_lshl_b32 s63, s61, 20
    s_lshl_b32 s64, s3, 6
    s_add_u32 s63, s63, s64
    s_add_u32 s63, s63, s65
    s_lshl_b32 s66, s3, 15
    s_add_u32 m0, s66, 24576
    """)
    for q in range(8):
        a(f"buffer_load_dwordx4 v5, s[40:43], s63 offen {prm.nt_wuv} lds", tag="wuv")
        a("s_add_u32 m0, m0, 1024\ns_add_u32 s63, s63, 0x20000")
    a("""
    v_lshlrev_b32 v6, 1, v3
    v_xor_b32 v6, v6, v2
    v_xor_b32 v7, 8, v6
    v_lshlrev_b32 v6, 4, v6
    v_lshlrev_b32 v7, 4, v7
    v_lshl_add_u32 v6, v3, 10, v6
    v_lshl_add_u32 v7, v3, 10, v7
    s_lshl_b32 s63, s60, 17
    s_lshl_b32 s64, s3, 8
    s_add_u32 s63, s63, s64
    s_mov_b32 m0, s66
    s_nop 0
    """)
    def wo_dma(q):
        a(f"buffer_load_dwordx4 v{6 + ((q >> 1) & 1)}, s[44:47], s63 offen {prm.nt_wo} lds", tag=f"wo{q//8}")
        a("s_add_u32 m0, m0, 1024\ns_add_u32 s63, s63, 4096")
    for q in range(24): wo_dma(q)
    a("""
    v_lshrrev_b32 v8, 2, v2
    v_lshl_add_u32 v8, v3, 3, v8
    v_and_b32 v10, 3, v2
    v_lshlrev_b32 v11, 6, v8
    v_lshl_add_u32 v11, v10, 3, v11
    v_add_u32 v11, s66, v11
    """)
    a.vmwait("wuv")
    for T in range(2):
        for t in range(4):
            for e in range(2):
                a(f"ds_read_b64_tr_b16 {ag(128+16*T+4*t+2*e,2)}, v11 offset:{24576 + 2048*t + 256*e + 32*T}", tag="uvf")
            if T == 1 and t == 1: a.lgwait("uvf")
    a.lg0()
    for q in range(24, 32): wo_dma(q)
    a("""
    v_lshrrev_b32 v11, 2, v2
    v_and_b32 v16, 1, v3
    v_lshl_add_u32 v11, v16, 2, v11
    v_lshlrev_b32 v11, 1, v11
    v_lshrrev_b32 v16, 1, v10
    v_xor_b32 v11, v11, v16
    v_lshlrev_b32 v11, 4, v11
    v_and_b32 v16, 1, v10
    v_lshl_add_u32 v11, v16, 3, v11
    v_lshl_add_u32 v11, v8, 8, v11
    v_add_u32 v16, s66, v11
    """)
    for p in range(1, 8): a(f"v_xor_b32 v{16+p}, {32*p}, v16")
    for t in range(4):
        a.vmwait(f"wo{t}")
        for p in range(8):
            for e in range(2):
                a(f"ds_read_b64_tr_b16 {ag(16*p+4*t+2*e,2)}, v{16+p} offset:{8192*t + 1024*e}", tag="wof")
            if p == 3: a.lgwait("wof")
        a.lg0()
    stamp(a, 4, prm)
    a(f"""
    s_lshr_b32 s63, s3, 1
    s_lshl_b32 s63, s63, 9
    s_lshl_b32 s64, s62, 10
    s_add_u32 s63, s63, s64
    s_add_u32 s63, s63, {WS_S}
    v_lshlrev_b32 v4, 3, v1
    s_and_b32 s64, s3, 1
    s_lshl_b32 s64, s64, 7
    v_lshl_add_u32 v5, v3, 5, s64
    v_lshlrev_b32 v6, 4, v2
    v_lshl_add_u32 v6, v3, 11, v6
    s_lshl_b32 s64, s62, 15
    s_lshl_b32 s66, s3, 13
    s_add_u32 s64, s64, s66
    s_add_u32 s64, s64, {WS_P}
    s_mul_i32 s66, s3, {XROW}
    v_and_b32 v7, 7, v2
    v_lshlrev_b32 v7, 1, v7
    v_lshl_add_u32 v7, v3, 6, v7
    v_add_u32 v7, s66, v7
    v_add_u32 v7, {W_OX}, v7
    v_and_b32 v8, 3, v2
    v_mul_u32_u24 v8, {XROW}, v8
    v_lshl_add_u32 v8, v3, 4, v8
    v_add_u32 v8, {W_OX}, v8
    v_bfe_u32 v10, v2, 1, 1
    v_mul_u32_u24 v10, {XROW}, v10
    v_lshl_add_u32 v10, v3, 3, v10
    s_lshl_b32 s66, s3, 6
    v_add_u32 v10, s66, v10
    v_add_u32 v10, {W_CX}, v10
    v_and_b32 v11, 1, v2
    v_mul_u32_u24 v11, {XROW}, v11
    v_lshl_add_u32 v11, v3, 4, v11
    v_add_u32 v11, {W_CX}, v11
    v_and_b32 v12, 1, v2
    v_lshlrev_b32 v12, 18, v12
    v_lshl_add_u32 v12, v3, 4, v12
    s_lshl_b32 s66, s3, 16
    s_lshl_b32 s67, s62, 6
    s_add_u32 s66, s66, s67
    s_add_u32 s66, s66, {WS_A}
    s_mov_b32 s67, 0
    """)
    a("L_w_spoll:")
    a("buffer_load_dwordx2 v[24:25], v4, s[36:39], s63 offen sc1")
    a(f"""
    s_add_u32 s67, s67, 1
    s_waitcnt vmcnt(0)
    v_max_u32 v26, v24, v25
    v_cmp_eq_u32 vcc, -1, v26
    s_cmp_ge_u32 s67, {SPIN}
    s_cbranch_scc1 L_w_sdone
    s_cbranch_vccnz L_w_spoll
    L_w_sdone:
    """)
    stamp(a, 5, prm)
    a("v_mov_b32 v26, v24")
    allreduce(a, "v_max_f32", 26, 27)
    a("""
    v_sub_f32 v26, v24, v26
    v_exp_f32 v26, v26
    v_cvt_pk_bf16_f32 v28, v26, v26
    """)
    for u in range(8): a(f"ds_bpermute_b32 v{40+u}, v5, v28 offset:{4*u}", tag=f"bp{u}")
    a("v_lshlrev_b32 v26, 16, v28\nv_mul_f32 v26, v26, v25")
    allreduce(a, "v_add_f32", 26, 27)
    a("v_rcp_f32 v26, v26")
    a("s_mov_b32 s67, 0")
    a("L_w_bpoll:")
    for u in range(8): a(f"buffer_load_dwordx4 {v(160+4*u,4)}, v6, s[36:39], s64 offen offset:{256*u} sc1", tag=f"bk{u}")
    a.lg0()
    for u in range(8):
        for p in range(4): a(f"v_perm_b32 v{128+4*u+p}, v{40+u}, v{40+u}, v{32+2*p}")
    a("s_add_u32 s67, s67, 1")
    for u in range(8):
        a.vmwait(f"bk{u}")
        a(f"{MF} v[48:51], {v(160+4*u,4)}, {v(128+4*u,4)}, {'0' if u == 0 else 'v[48:51]'}")
        if u == 0: a("v_max3_u32 v27, v160, v161, v162\nv_max_u32 v27, v27, v163")
        else: a(f"v_max3_u32 v27, v27, v{160+4*u}, v{161+4*u}\nv_max3_u32 v27, v27, v{162+4*u}, v{163+4*u}")
    a(f"""
    v_cmp_eq_u32 vcc, -1, v27
    s_cmp_ge_u32 s67, {SPIN}
    s_cbranch_scc1 L_w_bdone
    s_cbranch_vccnz L_w_bpoll
    L_w_bdone:
    """)
    stamp(a, 6, prm)
    if prm.stamps: a("s_mov_b32 s88, s67")
    for i in range(4): a(f"v_mul_f32 v{48+i}, v26, v{48+i}")
    a("v_cvt_pk_bf16_f32 v52, v48, v49\nv_cvt_pk_bf16_f32 v53, v50, v51")
    a("ds_write_b16 v7, v52\nds_write_b16_d16_hi v7, v52 offset:16\nds_write_b16 v7, v53 offset:32\nds_write_b16_d16_hi v7, v53 offset:48")
    a("s_waitcnt lgkmcnt(0)\ns_barrier")
    for t in range(4): a(f"ds_read_b128 {v(84+4*t,4)}, v8 offset:{64*t}", tag=f"ob{t}")
    for t in range(4):
        a.lgwait(f"ob{t}")
        for T in range(2):
            a(f"{MF} {v(76+4*T,4)}, {ag(128+16*T+4*t,4)}, {v(84+4*t,4)}, {'0' if t == 0 else v(76+4*T,4)}")
    for i in range(8): a(f"v_add_f32_dpp v{76+i}, v{76+i}, v{76+i} quad_perm:[1,0,3,2] row_mask:0xf bank_mask:0xf")
    for i in range(4): a(f"v_cvt_pk_bf16_f32 v{52+i}, v{76+2*i}, v{77+2*i}")
    a("ds_write_b64 v10, v[52:53]\nds_write_b64 v10, v[54:55] offset:32")
    a("s_waitcnt lgkmcnt(0)\ns_barrier")
    for t in range(4): a(f"ds_read_b128 {v(84+4*t,4)}, v11 offset:{64*t}", tag=f"cb{t}")
    def st(p):
        a("s_mov_b64 exec, s[68:69]")
        a(f"buffer_store_dwordx4 {v(192+4*p,4)}, v12, s[36:39], s66 offen sc1")
        a("s_mov_b64 exec, -1\ns_add_u32 s66, s66, 8192")
    for pp in range(4):
        for t in range(4):
            if pp == 0: a.lgwait(f"cb{t}")
            for p in (2 * pp, 2 * pp + 1):
                a(f"{MF} {v(192+4*p,4)}, {ag(16*p+4*t,4)}, {v(84+4*t,4)}, {'0' if t == 0 else v(192+4*p,4)}")
            if pp > 0 and t == 2: st(2 * pp - 2)
            if pp > 0 and t == 3: st(2 * pp - 1)
    st(6); st(7)
    stamp(a, 7, prm)
    if prm.stamps:
        a("s_waitcnt vmcnt(0)"); stamp(a, 8, prm)
    stamp_out(a, prm, 10)
    a("s_endpgm")

def struct_f32(x):
    import struct
    return struct.unpack("<I", struct.pack("<f", x))[0]

def gen_att(a, prm):
    a.vm = []; a.lg = []
    a("""
    s_sub_u32 s61, s31, 16
    s_lshl_b32 s60, s61, 3
    s_add_u32 s60, s60, s30
    v_lshlrev_b32 v9, 4, v1
    v_mov_b32 v12, -1
    v_mov_b32 v13, -1
    v_mov_b32 v14, -1
    v_mov_b32 v15, -1
    s_lshl_b32 s62, s60, 17
    s_lshl_b32 s63, s3, 15
    s_add_u32 s62, s62, s63
    s_mul_i32 s63, s3, %d
    s_mov_b32 m0, s63
    s_waitcnt lgkmcnt(0)
    """ % (16 * ROW))
    srd(a, 40, "ckv")
    def row_dma(tag):
        a(f"buffer_load_dwordx4 v9, s[40:43], s62 offen {prm.nt_ckv} lds", tag=tag)
        a(f"s_add_u32 m0, m0, {ROW}\ns_add_u32 s62, s62, 1024")
    for i in range(16):
        row_dma("st1")
        if i == 3:
            srd(a, 36, "ws"); srd(a, 48, "dbg")
        if i == 7:
            a(f"""
            s_cmp_ge_u32 s60, 64
            s_cbranch_scc1 L_a_nopois
            s_lshl_b32 s64, s60, 13
            s_lshl_b32 s65, s3, 11
            s_add_u32 s64, s64, s65
            s_add_u32 s65, s64, {WS_F}
            s_add_u32 s64, s64, {WS_A}
            """)
            for sg in (64, 65):
                for o in (0, 1024): a(f"buffer_store_dwordx4 v[12:15], v9, s[36:39], s{sg} offen offset:{o} sc1", count=False)
            a("L_a_nopois:")
    a(f"s_add_u32 m0, s63, {A_ST2}")
    a("v_and_b32 v4, 1, v1\nv_lshlrev_b32 v4, 6, v4")
    for i in range(16):
        row_dma(f"st2_{i}")
        if i == prm.chk_at - 1:
            a("buffer_load_dword v10, v4, s[48:51], 0 offen sc1", tag="chk")
    stamp(a, 1, prm)
    a(f"""
    v_mul_u32_u24 v5, {ROW}, v2
    v_lshl_add_u32 v5, v3, 4, v5
    v_add_u32 v5, s63, v5
    v_add_u32 v6, {A_ST2}, v5
    v_lshrrev_b32 v7, 2, v2
    v_lshl_add_u32 v7, v3, 2, v7
    v_mul_u32_u24 v7, {ROW}, v7
    v_and_b32 v8, 3, v2
    v_lshl_add_u32 v7, v8, 3, v7
    s_lshl_b32 s64, s3, 8
    v_add_u32 v7, s64, v7
    v_add_u32 v8, {A_ST2}, v7
    """)
    a.vmwait("st1")
    stamp(a, 2, prm)
    for t in range(16):
        a(f"ds_read_b128 {ag(4*t,4)}, v5 offset:{64*t}", tag="k0")
        if t == 7: a.lgwait("k0")
    a("s_barrier")
    n = 0
    for pq in range(8):
        for u in range(4):
            a(f"ds_read_b64_tr_b16 {ag(128+16*pq+4*u,2)}, v7 offset:{16*u*ROW + 32*pq}", tag="v0")
            n += 1
            if n % 8 == 0: a.lgwait("v0")
    a("""
    s_cmp_ge_u32 s60, 64
    s_cbranch_scc1 L_a_nosig
    s_cmp_lg_u32 s3, 0
    s_cbranch_scc1 L_a_nosig
    s_and_b32 s64, s60, 1
    s_lshl_b32 s64, s64, 6
    s_add_u32 s64, s64, 128
    v_mov_b32 v11, 1
    s_mov_b64 exec, 1
    """)
    a("buffer_atomic_add v11, off, s[48:51], s64 sc1", count=False)
    a("s_mov_b64 exec, -1\nL_a_nosig:")
    a(f"""
    s_lshr_b32 s64, s60, 6
    s_lshl_b32 s64, s64, 15
    s_lshl_b32 s65, s3, 13
    s_add_u32 s64, s64, s65
    s_add_u32 s65, s64, 4096
    s_mul_i32 s66, s3, {8*QROW}
    v_add_u32 v11, s66, v9
    v_mul_u32_u24 v16, {QROW}, v2
    v_lshl_add_u32 v4, v3, 4, v16
    """)
    a("s_waitcnt lgkmcnt(0)\ns_barrier")
    a.vmwait("chk") if prm.chk_at > 16 - prm.qw else a.vmwait(f"st2_{15-prm.qw}")
    a(f"""
    s_mov_b32 s67, 0
    L_a_chk:
    v_cmp_gt_u32 vcc, 64, v10
    s_cbranch_vccz L_a_chkok
    s_add_u32 s67, s67, 1
    s_cmp_ge_u32 s67, {SPIN}
    s_cbranch_scc1 L_a_chkok
    v_and_b32 v16, 1, v1
    v_lshlrev_b32 v16, 6, v16
    """)
    a("buffer_load_dword v10, v16, s[48:51], 0 offen sc1", count=False)
    a("s_waitcnt vmcnt(0)\ns_branch L_a_chk\nL_a_chkok:")
    if prm.stamps: a("s_mov_b32 s92, s67")
    a.vmwait(f"st2_{15-prm.qw}")
    stamp(a, 3, prm)
    def q_dma(flags):
        a("s_mov_b32 m0, s66\ns_nop 0")
        for i in range(8):
            a(f"buffer_load_dwordx4 v9, s[36:39], s{64 + i//4} offen offset:{(i%4)*1024} {flags} lds", tag="q")
            if i < 7: a(f"s_add_u32 m0, m0, {QROW - 1024 if i != 3 else QROW + 3072}\ns_nop 0")
    q_dma(prm.q_first)
    a.vmwait("st2_15")
    stamp(a, 4, prm)
    for t in range(16):
        a(f"ds_read_b128 {ag(64+4*t,4)}, v6 offset:{64*t}", tag="k1")
        if t == 7: a.lgwait("k1")
    a("s_mov_b32 s67, 0")
    a("L_a_qchk:")
    a.vm0()
    for i in range(8): a(f"ds_read_b128 {v(128+4*i,4)}, v11 offset:{QROW*i}", tag=f"qo{i}")
    a("s_add_u32 s67, s67, 1")
    for i in range(8):
        a.lgwait(f"qo{i}")
        if i == 0: a("v_max3_u32 v16, v128, v129, v130\nv_max_u32 v16, v16, v131")
        else: a(f"v_max3_u32 v16, v16, v{128+4*i}, v{129+4*i}\nv_max3_u32 v16, v16, v{130+4*i}, v{131+4*i}")
    a(f"""
    v_cmp_eq_u32 vcc, -1, v16
    s_cbranch_vccz L_a_qok
    s_cmp_ge_u32 s67, {SPIN}
    s_cbranch_scc1 L_a_qok
    """)
    q_dma("sc1")
    a("s_branch L_a_qchk\nL_a_qok:")
    if prm.stamps: a("s_mov_b32 s98, s67")
    a("s_barrier")
    stamp(a, 5, prm)
    a.lg = []
    def qrd(t):
        for hg in range(2): a(f"ds_read_b128 {v(128+8*t+4*hg,4)}, v4 offset:{16*hg*QROW + 64*t}", tag=f"q{t}_{hg}")
    def vrd(k):
        pq, u = k // 4, k % 4
        a(f"ds_read_b64_tr_b16 {ag(128+16*pq+4*u+2,2)}, v8 offset:{16*u*ROW + 32*pq}", tag="v1")
    AH = 3
    for t in range(AH): qrd(t)
    for t in range(16):
        if t + AH < 16: qrd(t + AH)
        for hg in range(2):
            a.lgwait(f"q{t}_{hg}")
            for kt in range(2):
                acc = 16 + 8 * kt + 4 * hg
                a(f"{MF} {v(acc,4)}, {ag(64*kt+4*t,4)}, {v(128+8*t+4*hg,4)}, {'0' if t == 0 else v(acc,4)}")
            vrd(2 * t + hg)
        if t == 1:
            a("""
            s_lshr_b32 s52, s61, 2
            s_lshl_b32 s52, s52, 3
            s_add_u32 s52, s52, s30
            s_lshl_b32 s52, s52, 2
            s_and_b32 s53, s61, 3
            s_add_u32 s52, s52, s53
            """)
            srd(a, 40, "w1"); srd(a, 44, "w2")
        if t == 2:
            a(f"""
            v_lshrrev_b32 v10, 1, v1
            v_mul_u32_u24 v10, 3584, v10
            v_and_b32 v11, 1, v1
            v_lshl_add_u32 v10, v11, 4, v10
            s_lshl_b32 s53, s52, 5
            s_mul_i32 s54, s3, {4*32*3584}
            s_add_u32 s53, s53, s54
            s_lshl_b32 s54, s52, 14
            s_lshl_b32 s55, s3, 12
            s_add_u32 s54, s54, s55
            s_add_u32 s55, s55, {A_W1}
            s_mul_i32 s56, s3, {4*ROW}
            s_add_u32 s56, s56, {A_W2}
            """)
        if t == 3:
            a("s_cmp_ge_u32 s52, 112\ns_cbranch_scc1 L_a_noffn1\ns_mov_b32 m0, s55\ns_nop 0")
            for q in range(4):
                a(f"buffer_load_dwordx4 v10, s[40:43], s53 offen {prm.nt_ffn} lds", count=False)
                a(f"s_add_u32 m0, m0, 1024\ns_add_u32 s53, s53, {32*3584}")
            a("s_mov_b32 m0, s56\ns_nop 0")
            for q in range(4):
                a(f"buffer_load_dwordx4 v9, s[44:47], s54 offen offset:{1024*q} {prm.nt_ffn} lds", count=False)
                a(f"s_add_u32 m0, m0, {ROW-1024}\ns_nop 0")
            a("L_a_noffn1:")
        if t == 5:
            a(f"""
            v_and_b32 v10, 31, v1
            v_lshlrev_b32 v11, 4, v10
            v_add_u32 v11, {A_MX}, v11
            s_lshl_b32 s57, s3, 2
            v_add_u32 v12, s57, v11
            v_lshlrev_b32 v13, 4, v2
            v_add_u32 v13, {A_MX}, v13
            s_lshl_b32 s57, s3, 11
            s_add_u32 s57, s57, {A_PB}
            v_add_u32 v14, s57, v9
            v_add_u32 v15, {A_PB}, v9
            """)
        if t == 7:
            a(f"""
            v_lshlrev_b32 v5, 12, v10
            s_lshl_b32 s57, s3, 10
            s_lshl_b32 s58, s60, 3
            s_add_u32 s57, s57, s58
            s_add_u32 s57, s57, {WS_S}
            v_and_b32 v6, 1, v3
            v_lshlrev_b32 v6, 5, v6
            v_lshrrev_b32 v7, 1, v3
            v_lshl_add_u32 v6, v7, 4, v6
            v_lshl_add_u32 v6, v2, 17, v6
            s_lshl_b32 s58, s3, 15
            s_lshl_b32 s59, s60, 8
            s_add_u32 s58, s58, s59
            s_add_u32 s58, s58, {WS_P}
            s_add_u32 s59, s58, {16 << 17}
            v_and_b32 v7, 1, v3
            """)
    stamp(a, 6, prm)
    S = lambda kt, hg, r: 16 + 8 * kt + 4 * hg + r
    for hg in range(2):
        a(f"v_max3_f32 v{32+hg}, v{S(0,hg,0)}, v{S(0,hg,1)}, v{S(0,hg,2)}")
    for hg in range(2):
        a(f"v_max3_f32 v{32+hg}, v{32+hg}, v{S(0,hg,3)}, v{S(1,hg,0)}")
    for hg in range(2):
        a(f"v_max3_f32 v{32+hg}, v{32+hg}, v{S(1,hg,1)}, v{S(1,hg,2)}")
    for hg in range(2):
        a(f"v_max_f32 v{32+hg}, v{32+hg}, v{S(1,hg,3)}")
    a("""
    v_permlane16_swap_b32 v32, v33
    v_max_f32 v32, v32, v33
    v_mov_b32 v33, v32
    v_permlane32_swap_b32 v32, v33
    v_max_f32 v32, v32, v33
    ds_write_b32 v12, v32
    s_waitcnt lgkmcnt(0)
    s_barrier
    ds_read_b128 v[32:35], v13
    ds_read_b128 v[36:39], v13 offset:256
    v_cmp_eq_u32 vcc, 1, v7
    s_waitcnt lgkmcnt(1)
    v_max3_f32 v32, v32, v33, v34
    v_max_f32 v32, v32, v35
    s_waitcnt lgkmcnt(0)
    v_max3_f32 v36, v36, v37, v38
    v_max_f32 v33, v36, v39
    """)
    for hg in range(2):
        for kt in range(2):
            for r in range(4): a(f"v_sub_f32 v{S(kt,hg,r)}, v{S(kt,hg,r)}, v{32+hg}")
        for kt in range(2):
            for r in range(4): a(f"v_exp_f32 v{S(kt,hg,r)}, v{S(kt,hg,r)}")
        if hg == 0: a("v_cndmask_b32 v44, v32, v33, vcc")
        for kt in range(2):
            for r2 in range(2): a(f"v_cvt_pk_bf16_f32 v{36+4*hg+2*kt+r2}, v{S(kt,hg,2*r2)}, v{S(kt,hg,2*r2+1)}")
        a(f"ds_write_b128 v14, {v(36+4*hg,4)} offset:{1024*hg}")
    for hg in range(2):
        a(f"v_add_f32 v{34+hg}, v{S(0,hg,0)}, v{S(0,hg,1)}")
    for (kt, r) in [(0, 2), (0, 3), (1, 0), (1, 1), (1, 2), (1, 3)]:
        for hg in range(2): a(f"v_add_f32 v{34+hg}, v{34+hg}, v{S(kt,hg,r)}")
    a("""
    v_permlane16_swap_b32 v34, v35
    v_add_f32 v34, v34, v35
    v_mov_b32 v35, v34
    v_permlane32_swap_b32 v34, v35
    v_add_f32 v34, v34, v35
    ds_write_b32 v12, v34 offset:512
    s_waitcnt lgkmcnt(0)
    s_barrier
    """)
    a.lg = []
    for u in range(4):
        for hg in range(2): a(f"ds_read_b128 {v(128+8*u+4*hg,4)}, v15 offset:{(2*u+hg)*1024}", tag=f"p{u}_{hg}")
    a("ds_read_b128 v[32:35], v11 offset:512", tag="ls")
    stamp(a, 7, prm)
    O = lambda pq, hg: 64 + 8 * pq + 4 * hg
    def cvt_store(pp, hg):
        b = 48 + 4 * hg + 8 * (pp & 1)
        for k, pq in enumerate((2 * pp, 2 * pp + 1)):
            a(f"v_cvt_pk_bf16_f32 v{b+2*k}, v{O(pq,hg)}, v{O(pq,hg)+1}\nv_cvt_pk_bf16_f32 v{b+2*k+1}, v{O(pq,hg)+2}, v{O(pq,hg)+3}")
        return b
    def swap_store(pp, hg):
        b = 48 + 4 * hg + 8 * (pp & 1)
        a(f"v_permlane16_swap_b32 v{b}, v{b+2}\nv_permlane16_swap_b32 v{b+1}, v{b+3}")
        a(f"buffer_store_dwordx4 {v(b,4)}, v6, s[36:39], s{58+hg} offen offset:{64*pp} sc1", tag="pst")
    for pp in range(4):
        for u in range(4):
            for hg in range(2):
                if pp == 0: a.lgwait(f"p{u}_{hg}")
                for pq in (2 * pp, 2 * pp + 1):
                    a(f"{MF} {v(O(pq,hg),4)}, {ag(128+16*pq+4*u,4)}, {v(128+8*u+4*hg,4)}, {'0' if u == 0 else v(O(pq,hg),4)}")
                if pp > 0 and u == 1: cvt_store(pp - 1, hg)
                if pp > 0 and u == 2: swap_store(pp - 1, hg)
            if pp == 0 and u == 3:
                a.lgwait("ls")
                a("v_add_f32 v32, v32, v33\nv_add_f32 v34, v34, v35\nv_add_f32 v45, v32, v34\ns_mov_b32 exec_hi, 0")
                a("buffer_store_dwordx2 v[44:45], v5, s[36:39], s57 offen sc1", tag="sst")
                a("s_mov_b64 exec, -1")
    for hg in range(2): cvt_store(3, hg)
    for hg in range(2): swap_store(3, hg)
    stamp(a, 8, prm)
    a("s_cmp_ge_u32 s52, 112\ns_cbranch_scc1 L_a_noffn2")
    srd(a, 32, "x")
    a(f"""
    v_and_b32 v4, 1, v2
    v_lshlrev_b32 v4, 10, v4
    v_lshl_add_u32 v4, v3, 4, v4
    v_and_b32 v5, 1, v1
    v_lshlrev_b32 v5, 6, v5
    """)
    for t in range(16): a(f"buffer_load_dwordx4 {v(128+4*t,4)}, v4, s[32:35], 0 offen offset:{64*t}", tag="xf")
    a("buffer_load_dword v10, v5, s[48:51], 0 offen offset:128 sc1", tag="chkA")
    a(f"""
    v_lshrrev_b32 v6, 2, v2
    v_and_b32 v7, 3, v2
    v_lshl_add_u32 v8, v3, 3, v6
    v_lshlrev_b32 v8, 5, v8
    v_lshl_add_u32 v8, v7, 3, v8
    v_add_u32 v8, {A_W1}, v8
    v_lshl_add_u32 v11, v3, 2, v6
    v_mul_u32_u24 v11, {ROW}, v11
    v_lshl_add_u32 v11, v7, 3, v11
    s_lshl_b32 s53, s3, 8
    s_add_u32 s53, s53, {A_W2}
    v_add_u32 v11, s53, v11
    v_and_b32 v12, 1, v2
    v_lshlrev_b32 v12, 18, v12
    v_lshl_add_u32 v12, v3, 4, v12
    s_lshl_b32 s53, s3, 16
    s_lshl_b32 s54, s52, 6
    s_add_u32 s53, s53, s54
    s_add_u32 s53, s53, {WS_F}
    """)
    a.vmwait("sst")
    a("s_barrier")
    a.lg = []
    for t in range(16):
        for e in range(2): a(f"ds_read_b64_tr_b16 {v(192+4*t+2*e,2)}, v8 offset:{1024*t + 128*e}", tag=f"w1_{t}")
        if t % 4 == 3: a.lgwait(f"w1_{t-2}")
    for p in range(8): a(f"ds_read_b64_tr_b16 {v(64+2*p,2)}, v11 offset:{32*p}", tag="w2")
    a.vmwait("xf"); a.lg0()
    for t in range(16):
        a(f"{MF} v[16:19], {v(192+4*t,4)}, {v(128+4*t,4)}, {'0' if t == 0 else 'v[16:19]'}")
    a("v_cvt_pk_bf16_f32 v20, v16, v17\nv_cvt_pk_bf16_f32 v21, v18, v19")
    a("v_lshlrev_b32 v16, 16, v20\nv_and_b32 v17, 0xffff0000, v20\nv_lshlrev_b32 v18, 16, v21\nv_and_b32 v19, 0xffff0000, v21")
    a(f"s_mov_b32 s54, {hex(struct_f32(-math.log2(math.e)))}")
    for i in range(4): a(f"v_mul_f32 v{20+i}, s54, v{16+i}")
    for i in range(4): a(f"v_exp_f32 v{20+i}, v{20+i}")
    for i in range(4): a(f"v_add_f32 v{20+i}, 1.0, v{20+i}")
    for i in range(4): a(f"v_rcp_f32 v{20+i}, v{20+i}")
    for i in range(4): a(f"v_mul_f32 v{16+i}, v{16+i}, v{20+i}")
    a("v_cvt_pk_bf16_f32 v20, v16, v17\nv_cvt_pk_bf16_f32 v21, v18, v19")
    for p in range(8): a(f"v_mfma_f32_16x16x16_bf16 {v(96+4*p,4)}, {v(64+2*p,2)}, v[20:21], 0")
    a(f"""
    s_mov_b32 s67, 0
    s_waitcnt vmcnt(0)
    L_a_chkA:
    v_cmp_gt_u32 vcc, 32, v10
    s_cbranch_vccz L_a_chkAok
    s_add_u32 s67, s67, 1
    s_cmp_ge_u32 s67, {SPIN}
    s_cbranch_scc1 L_a_chkAok
    """)
    a("buffer_load_dword v10, v5, s[48:51], 0 offen offset:128 sc1")
    a("s_waitcnt vmcnt(0)\ns_branch L_a_chkA\nL_a_chkAok:")
    a("s_mov_b32 s68, 0x00030003\ns_mov_b32 s69, 0x00030003\ns_mov_b64 exec, s[68:69]")
    for p in range(8):
        a(f"buffer_store_dwordx4 {v(96+4*p,4)}, v12, s[36:39], s53 offen sc1")
        a("s_add_u32 s53, s53, 8192")
    a("s_mov_b64 exec, -1")
    a("L_a_noffn2:")
    stamp(a, 9, prm)
    a("s_cmp_ge_u32 s60, 64\ns_cbranch_scc1 L_a_end\ns_cmp_lg_u32 s3, 0\ns_cbranch_scc1 L_a_end")
    srd(a, 32, "x"); srd(a, 40, "gate"); srd(a, 44, "out")
    a("s_lshr_b32 s53, s60, 5\ns_lshl_b32 s53, s53, 10")
    a("buffer_load_dwordx4 v[16:19], v9, s[32:35], s53 offen\nbuffer_load_dwordx4 v[20:23], v9, s[40:43], 0 offen")
    a(f"""
    s_lshl_b32 s54, s60, 13
    s_add_u32 s55, s54, {WS_F}
    s_add_u32 s56, s55, 4096
    s_add_u32 s54, s54, {WS_A}
    s_add_u32 s57, s54, 4096
    v_and_b32 v4, 3, v2
    v_lshl_add_u32 v4, v4, 2, v3
    v_lshlrev_b32 v4, 1, v4
    s_lshl_b32 s58, s60, 5
    s_waitcnt vmcnt(0)
    """)
    for i in range(4):
        a(f"""
        v_lshlrev_b32 v24, 16, v{16+i}
        v_and_b32 v25, 0xffff0000, v{16+i}
        v_lshlrev_b32 v26, 16, v{20+i}
        v_and_b32 v27, 0xffff0000, v{20+i}
        v_mul_f32 v24, v24, v26
        v_mul_f32 v25, v25, v27
        v_cvt_pk_bf16_f32 v24, v24, v25
        v_lshlrev_b32 v25, 16, v24
        v_and_b32 v24, 0xffff0000, v24
        """)
        a("v_add_f32 v28, v24, v25" if i == 0 else "v_add_f32 v28, v28, v24\nv_add_f32 v28, v28, v25")
    allreduce(a, "v_add_f32", 28, 29)
    a(f"""
    v_cvt_pk_bf16_f32 v28, v28, v28
    v_and_b32 v28, 0xffff0000, v28
    s_mov_b32 s59, {hex(struct_f32(-math.log2(math.e)))}
    v_mul_f32 v28, s59, v28
    v_exp_f32 v28, v28
    v_add_f32 v28, 1.0, v28
    v_rcp_f32 v28, v28
    v_cvt_pk_bf16_f32 v28, v28, v28
    v_and_b32 v28, 0xffff0000, v28
    v_sub_f32 v29, 1.0, v28
    v_cvt_pk_bf16_f32 v29, v29, v29
    v_and_b32 v29, 0xffff0000, v29
    """)
    def gather(lab, nld, s0, s1, dst):
        a(f"s_mov_b32 s67, 0\n{lab}:")
        for u in range(nld): a(f"buffer_load_dwordx4 {v(64+4*u,4)}, v9, s[36:39], s{s0 if u < 4 else s1} offen offset:{1024*(u%4)} sc1", tag=f"{lab}{u}")
        a("s_add_u32 s67, s67, 1")
        for u in range(nld):
            a.vmwait(f"{lab}{u}")
            if u == 0: a("v_max3_u32 v30, v64, v65, v66\nv_max_u32 v30, v30, v67")
            else: a(f"v_max3_u32 v30, v30, v{64+4*u}, v{65+4*u}\nv_max3_u32 v30, v30, v{66+4*u}, v{67+4*u}")
            if u == 1:
                for i in range(4): a(f"v_add_f32 v{32+i}, v{64+i}, v{68+i}")
            if u > 1:
                for i in range(4): a(f"v_add_f32 v{32+i}, v{32+i}, v{64+4*u+i}")
        a(f"""
        v_cmp_eq_u32 vcc, -1, v30
        s_cmp_ge_u32 s67, {SPIN}
        s_cbranch_scc1 {lab}_ok
        s_cbranch_vccnz {lab}
        {lab}_ok:
        """)
        for sh in (4, 8):
            for i in range(4): a(f"v_add_f32_dpp v{32+i}, v{32+i}, v{32+i} row_ror:{sh} row_mask:0xf bank_mask:0xf")
        a(f"""
        v_permlane16_swap_b32 v32, v33
        v_permlane16_swap_b32 v34, v35
        v_add_f32 v32, v32, v33
        v_add_f32 v34, v34, v35
        v_permlane32_swap_b32 v32, v34
        v_add_f32 v32, v32, v34
        v_cvt_pk_bf16_f32 v{dst}, v32, v32
        v_and_b32 v{dst}, 0xffff0000, v{dst}
        """)
    gather("L_f_b", 7, 55, 56, 36)
    a("v_mul_f32 v36, v29, v36\nv_cvt_pk_bf16_f32 v36, v36, v36\nv_and_b32 v36, 0xffff0000, v36")
    stamp(a, 10, prm)
    gather("L_f_a", 8, 54, 57, 37)
    if prm.stamps: a("s_mov_b32 s94, s67")
    a("""
    v_mul_f32 v37, v28, v37
    v_cvt_pk_bf16_f32 v37, v37, v37
    v_and_b32 v37, 0xffff0000, v37
    v_add_f32 v37, v37, v36
    v_cvt_pk_bf16_f32 v37, v37, v37
    s_mov_b32 s68, 0x000f000f
    s_mov_b32 s69, 0x000f000f
    s_mov_b64 exec, s[68:69]
    """)
    if prm.hold:
        a(f"""
        L_hold:
        s_memrealtime s[52:53]
        s_waitcnt lgkmcnt(0)
        s_sub_u32 s52, s52, s100
        s_cmp_lt_u32 s52, {prm.hold}
        s_cbranch_scc1 L_hold
        """)
    a("buffer_store_short v37, v4, s[44:47], s58 offen")
    a("L_a_end:")
    if prm.stamps:
        a("s_memrealtime s[96:97]")
    stamp_out(a, prm, 15)
    a("s_endpgm")

def gen(prm):
    a = Asm()
    a("s_cmp_ge_u32 s2, 256\ns_cbranch_scc1 L_exit")
    stamp(a, 0, prm)
    if prm.hold: a("s_memrealtime s[100:101]")
    a("""
    s_load_dwordx16 s[4:19], s[0:1], 0
    s_load_dwordx8 s[20:27], s[0:1], 64
    s_load_dwordx2 s[28:29], s[0:1], 96
    v_lshrrev_b32 v1, 6, v0
    s_and_b32 s30, s2, 7
    v_readfirstlane_b32 s3, v1
    s_lshr_b32 s31, s2, 3
    v_and_b32 v1, 63, v0
    v_and_b32 v2, 15, v0
    v_bfe_u32 v3, v0, 4, 2
    """)
    if prm.stamps:
        for i in range(1, 15): a(f"s_mov_b32 s{70+2*i}, 0")
    if prm.icpf:
        a("""
        s_and_b32 s32, s31, 7
        s_or_b32 s32, s32, s3
        s_cmp_lg_u32 s32, 0
        s_cbranch_scc1 L_nopf
        s_getpc_b64 s[32:33]
        L_pc:
        s_mov_b32 s34, L_exit-L_pc
        v_lshlrev_b32 v4, 7, v1
        """)
        for k in range(2):
            a("v_min_u32 v5, s34, v4")
            a("global_load_dword v127, v5, s[32:33]", count=False)
            a("v_add_u32 v4, 0x2000, v4")
        a("L_nopf:")
    a("s_cmp_lt_u32 s31, 16\ns_cbranch_scc1 L_wgt")
    gen_att(a, prm)
    a.vm = []; a.lg = []
    gen_wgt(a, prm)
    a("L_exit:\ns_endpgm")
    return a

HEADER = """Fused decode step: latent-KV attention (weights absorbed) + SiLU FFN + sigmoid gate.
One persistent launch, 256 workgroups: 128 weight-side workgroups and 128 attention workgroups."""

def emit(prm, path):
    a = gen(prm)
    txt = kernel_file([dict(name=NAME + "_kernel", body=a.text(), grid=256, block=256, lds=LDS_BYTES, vgpr=512, accum=256, sgpr=102)], HEADER)
    open(path, "w").write(txt)
    return a

if __name__ == "__main__":
    prm = P()
    out = sys.argv[1] if len(sys.argv) > 1 else "k.s"
    for kv in sys.argv[2:]:
        k, val = kv.split("=", 1)
        cur = getattr(prm, k)
        setattr(prm, k, (val == "1") if isinstance(cur, bool) else type(cur)(val.replace("_", " ")) if isinstance(cur, str) else int(val))
    a = emit(prm, out)
    print("instrs", len(a.ins), "nops", a.nnop, "lds", LDS_BYTES)
```

```python
import sys, math, struct
from asm2 import *

WS_Q = 0x0
WS_S = 0x10000
WS_H1 = 0x18000
WS_H2 = 0x1C000
WS_A = 0x80000
WS_P = 0x200000
PSTR = 32768 + 128
SZ = dict(x=2048, ckv=16 << 20, wq=4 << 20, wuk=4 << 20, wuv=4 << 20, wo=4 << 20, w1=512 * 1792 * 2, w2=512 * 1792 * 2, gate=1024, out=2048, dbg=256, ws=WS_BYTES)
PTR = dict(x=4, ckv=6, wq=8, wuk=10, wuv=12, wo=14, w1=18, w2=20, gate=22, out=24, dbg=26, ws=28)
SPIN = 30000
ROW = 1056
A_ST1 = 0; A_ST2 = 64 * ROW; A_Q = 0; QROW = 1056
A_PB = 128 * ROW; A_MX = A_PB + 8192; A_END = A_MX + 512
W_QX = 131072; XROW = 272; W_OX = W_QX + 8 * XROW; W_CX = W_OX + 4 * XROW; W_W1 = W_CX + 2 * XROW + 32; W_END = W_W1 + 16384
LDS_BYTES = max(A_END, W_END)
LOG2E = math.log2(math.e)

class P:
    stamps = False
    nt_ckv = ""; nt_wq = ""; nt_wuk = ""; nt_wuv = ""; nt_wo = ""; nt_ffn = ""
    qw = 4
    chk_at = 8
    apois_at = 0
    thr = 0
    thr_n = 12
    rot = True
    lag = 10
    icpf = True
    q_first = "sc1"
    ah = 4
    h1_at = 14
    h2_at = 0
    pre_dma = 0
    tlbw = True
    hold = 0
    probe = ""

def v(a, n=1): return f"v{a}" if n == 1 else f"v[{a}:{a+n-1}]"
def ag(a, n=1): return f"a{a}" if n == 1 else f"a[{a}:{a+n-1}]"
def f32(x): return hex(struct.unpack("<I", struct.pack("<f", x))[0])

def srd(a, d, name):
    p = PTR[name]
    a(f"s_mov_b32 s{d}, s{p}\ns_mov_b32 s{d+1}, s{p+1}\ns_mov_b32 s{d+2}, {SZ[name]}\ns_mov_b32 s{d+3}, 0x20000")

def stamp(a, i, prm):
    if prm.stamps or prm.probe == f"{a.role}{i}" or (prm.probe and i == 0): a(f"s_memrealtime s[{70+2*i}:{71+2*i}]")

def stamp_out(a, prm, nst):
    if prm.probe:
        pi = int(prm.probe[1:])
        lab = f"L_pr_{a.role}"
        a(f"s_mov_b64 exec, 1\ns_waitcnt lgkmcnt(0)\ns_cmp_lg_u32 s3, 0\ns_cbranch_scc1 {lab}\ns_not_b32 s30, s70\nv_mov_b32 v4, s30")
        a("buffer_atomic_umax v4, off, s[48:51], 0 offset:16 sc1")
        if prm.probe[0] == a.role:
            a(f"v_mov_b32 v5, s{70+2*pi}\nbuffer_atomic_umax v5, off, s[48:51], 0 offset:20 sc1")
        a(f"s_waitcnt vmcnt(0)\nv_mov_b32 v4, 1\nbuffer_atomic_add v4, off, s[48:51], 0 offset:24 sc1")
        if a.role == "A":
            a(f"""
            s_cmp_lg_u32 s60, 0
            s_cbranch_scc1 {lab}
            s_mov_b32 s31, 0
            L_pr_w:
            buffer_load_dwordx3 v[8:10], off, s[48:51], 0 offset:16 sc1
            s_add_u32 s31, s31, 1
            s_waitcnt vmcnt(0)
            v_readfirstlane_b32 s32, v10
            s_cmp_ge_u32 s31, {SPIN}
            s_cbranch_scc1 L_pr_g
            s_cmp_lt_u32 s32, 256
            s_cbranch_scc1 L_pr_w
            L_pr_g:
            v_readfirstlane_b32 s32, v8
            v_readfirstlane_b32 s33, v9
            s_not_b32 s32, s32
            s_sub_u32 s33, s33, s32
            s_min_u32 s33, s33, 5000
            s_mul_i32 s33, s33, 10
            s_add_u32 s33, s33, 3000
            L_pr_h:
            s_memrealtime s[52:53]
            s_waitcnt lgkmcnt(0)
            s_sub_u32 s52, s52, s32
            s_cmp_lt_u32 s52, s33
            s_cbranch_scc1 L_pr_h
            """)
        a(f"{lab}:")
    if not prm.stamps: return
    a(f"""
    s_mov_b64 exec, -1
    s_waitcnt lgkmcnt(0)
    s_lshl_b32 s30, s2, 2
    s_add_u32 s30, s30, s3
    s_lshl_b32 s30, s30, 6
    s_add_u32 s30, s30, {STAMP_OFF}
    v_mov_b32 v4, 0
    """)
    for i in range(nst):
        a(f"v_mov_b32 v5, s{70+2*i}")
        a(f"buffer_store_dword v5, v4, s[36:39], s30 offen offset:{4*i}")

def allreduce(a, op, xs, ts):
    for sh in (8, 4, 2, 1):
        for x in xs: a(f"{op}_dpp v{x}, v{x}, v{x} row_ror:{sh} row_mask:0xf bank_mask:0xf")
    for sw in ("16", "32"):
        for x, t in zip(xs, ts): a(f"v_mov_b32 v{t}, v{x}")
        for x, t in zip(xs, ts): a(f"v_permlane{sw}_swap_b32 v{x}, v{t}")
        for x, t in zip(xs, ts): a(f"{op} v{x}, v{x}, v{t}")

def rnd_bf16(a, x):
    a(f"v_cvt_pk_bf16_f32 v{x}, v{x}, v{x}\nv_and_b32 v{x}, 0xffff0000, v{x}")

def cnt_check(a, lab, vreg, vaddr, off, target, cntreg="s67"):
    a(f"""
    s_mov_b32 {cntreg}, 0
    {lab}:
    v_cmp_gt_u32 vcc, {target}, v{vreg}
    s_cbranch_vccz {lab}_ok
    s_add_u32 {cntreg}, {cntreg}, 1
    s_cmp_ge_u32 {cntreg}, {SPIN}
    s_cbranch_scc1 {lab}_ok
    """)
    a(f"buffer_load_dword v{vreg}, v{vaddr}, s[48:51], 0 offen offset:{off} sc1", count=False)
    a(f"s_waitcnt vmcnt(0)\ns_branch {lab}\n{lab}_ok:")

def flag_poll(a, lab, vreg, soff):
    a(f"s_mov_b32 s67, 0\n{lab}:")
    a(f"buffer_load_dword v{vreg}, off, s[36:39], {soff} sc1")
    a(f"""
    s_add_u32 s67, s67, 1
    s_waitcnt vmcnt(0)
    v_cmp_eq_u32 vcc, -1, v{vreg}
    s_cmp_ge_u32 s67, {SPIN}
    s_cbranch_scc1 {lab}_ok
    s_cbranch_vccnz {lab}
    {lab}_ok:
    """)

MF = "v_mfma_f32_16x16x32_bf16"
DPPM = "row_mask:0xf bank_mask:0xf"

def gen_wgt(a, prm):
    a.role = "W"
    a("L_wgt:")
    a("""
    s_lshr_b32 s60, s31, 2
    s_lshl_b32 s60, s60, 3
    s_add_u32 s60, s60, s30
    s_and_b32 s61, s31, 3
    s_lshl_b32 s62, s60, 2
    s_add_u32 s62, s62, s61
    v_lshrrev_b32 v4, 3, v2
    v_lshlrev_b32 v4, 10, v4
    v_lshl_add_u32 v4, v3, 6, v4
    v_lshlrev_b32 v5, 4, v2
    v_lshl_add_u32 v5, v3, 18, v5
    v_lshrrev_b32 v6, 2, v2
    v_lshlrev_b32 v6, 3, v6
    v_and_b32 v7, 3, v2
    v_add_u32 v6, v6, v7
    v_lshlrev_b32 v6, 13, v6
    v_lshl_add_u32 v6, v3, 4, v6
    v_lshlrev_b32 v9, 4, v1
    s_lshl_b32 s64, s3, 20
    s_lshl_b32 s65, s60, 8
    s_add_u32 s64, s64, s65
    s_lshl_b32 s54, s61, 20
    s_lshl_b32 s55, s3, 18
    s_add_u32 s54, s54, s55
    s_add_u32 s54, s54, s65
    s_add_u32 s55, s54, 32768
    """)
    a("s_lshl_b32 s66, s61, 16" if prm.rot else "s_mov_b32 s66, 0")
    a("s_lshl_b32 s63, s3, 8")
    for u in range(4):
        if prm.rot: a(f"s_add_u32 s{56+u}, s61, {u}\ns_and_b32 s{56+u}, s{56+u}, 3\ns_lshl_b32 s{56+u}, s{56+u}, 4\ns_add_u32 s{56+u}, s{56+u}, s63")
        else: a(f"s_add_u32 s{56+u}, s63, {16*u}")
    a("s_waitcnt lgkmcnt(0)")
    srd(a, 40, "wq"); srd(a, 32, "x")
    def wq_load(t):
        a(f"s_add_u32 s63, s64, s66")
        a(f"buffer_load_dwordx4 {ag(4*t,4)}, v5, s[40:43], s63 offen {prm.nt_wq}", tag=f"wq{t}")
        a("s_add_u32 s66, s66, 8192\ns_and_b32 s66, s66, 0x3ffff")
    for t in range(2): wq_load(t)
    for u in range(4): a(f"buffer_load_dwordx4 {v(16+4*u,4)}, v4, s[32:35], s{56+u} offen", tag="x")
    srd(a, 36, "ws"); srd(a, 44, "wuk")
    a(f"""
    v_mov_b32 v12, -1
    v_mov_b32 v13, -1
    v_mov_b32 v14, -1
    v_mov_b32 v15, -1
    v_and_b32 v10, 1, v3
    v_lshlrev_b32 v10, 18, v10
    v_lshrrev_b32 v11, 1, v3
    v_lshl_add_u32 v10, v11, 15, v10
    v_lshrrev_b32 v11, 3, v2
    v_lshl_add_u32 v10, v11, 14, v10
    v_and_b32 v11, 7, v2
    v_lshl_add_u32 v100, v11, 4, v10
    s_lshl_b32 s52, s3, 16
    s_lshl_b32 s53, s62, 7
    s_add_u32 s52, s52, s53
    s_add_u32 s53, s53, {WS_H2}
    s_add_u32 s52, s52, {WS_A}
    """)
    a("buffer_store_dwordx4 v[12:15], v100, s[36:39], s52 offen sc1", tag="pois")
    a(f"""
    s_cmp_lg_u32 s3, 0
    s_cbranch_scc1 L_w_nopq
    v_lshlrev_b32 v10, 4, v2
    v_lshl_add_u32 v10, v3, 15, v10
    s_lshl_b32 s63, s62, 8
    s_mov_b32 exec_hi, 0
    """)
    a(f"buffer_store_dwordx4 v[12:15], v10, s[36:39], s63 offen sc1", count=False)
    a("s_mov_b64 exec, 1")
    a(f"buffer_store_dword v12, off, s[36:39], s53 sc1", count=False)
    a("s_mov_b64 exec, -1\nL_w_nopq:")
    for t in range(2, 8): wq_load(t)
    for T in range(2):
        for t in range(4):
            a(f"buffer_load_dwordx4 {v(40+16*T+4*t,4)}, v6, s[44:47], s{54+T} offen offset:{64*t} {prm.nt_wuk}", tag="wuk")
    srd(a, 48, "dbg")
    a(f"""
    v_and_b32 v6, 1, v2
    v_cmp_eq_u32 vcc, 1, v6
    v_mov_b32 v7, 0x0c0c0100
    v_mov_b32 v8, 0x01000c0c
    v_cndmask_b32 v10, v7, v8, vcc
    v_mov_b32 v7, 0x0c0c0302
    v_mov_b32 v8, 0x03020c0c
    v_cndmask_b32 v11, v7, v8, vcc
    v_bfe_u32 v6, v2, 1, 2
    v_mov_b32 v7, 0x0c0c0c0c
    """)
    for p in range(4):
        a(f"v_cmp_eq_u32 vcc, {p}, v6\nv_cndmask_b32 v{32+2*p}, v7, v10, vcc\nv_cndmask_b32 v{33+2*p}, v7, v11, vcc")
    a(f"""
    v_lshrrev_b32 v7, 3, v2
    s_lshl_b32 s63, s3, 1
    v_add_u32 v7, s63, v7
    v_mul_u32_u24 v7, {XROW}, v7
    v_and_b32 v8, 7, v2
    v_lshl_add_u32 v7, v8, 1, v7
    v_lshl_add_u32 v7, v3, 6, v7
    v_add_u32 v7, {W_QX}, v7
    v_mul_u32_u24 v8, {XROW}, v8
    v_lshl_add_u32 v8, v3, 4, v8
    v_add_u32 v8, {W_QX}, v8
    v_lshlrev_b32 v10, 15, v2
    v_lshl_add_u32 v10, v3, 4, v10
    s_lshl_b32 s56, s62, 8
    s_lshl_b32 s57, s3, 6
    s_add_u32 s56, s56, s57
    s_mov_b32 s57, {f32(128 ** -0.5 * LOG2E)}
    s_mov_b32 s68, 0x00030003
    s_mov_b32 s69, 0x00030003
    """)
    a.vmwait("pois" if False else "wq2")
    a("s_barrier")
    a("s_cmp_lg_u32 s3, 0\ns_cbranch_scc1 L_w_nosig")
    a("s_and_b32 s63, s62, 1\ns_lshl_b32 s63, s63, 6\nv_mov_b32 v11, 1\ns_mov_b64 exec, 1")
    a("buffer_atomic_add v11, off, s[48:51], s63 sc1", count=False)
    a("s_mov_b64 exec, -1\nL_w_nosig:")
    stamp(a, 1, prm)
    nperm = 0; nm = 0
    def perms(upto):
        nonlocal nperm
        while nperm < min(upto, 128):
            t, p = nperm // 4, nperm % 4
            a(f"v_perm_b32 v{128+4*t+p}, v{16+(t>>1)}, v{16+(t>>1)}, v{32+2*p+(t&1)}"); nperm += 1
    def mf():
        nonlocal nm
        t = nm
        perms(4 * t + 4)
        a.vmwait(f"wq{t}")
        a(f"{MF} v[72:75], {ag(4*t,4)}, {v(128+4*t,4)}, {'0' if t == 0 else 'v[72:75]'}"); nm += 1
    for t in range(8, 32):
        wq_load(t)
        perms(nperm + 6)
        while nm <= t - prm.lag and nm < (t - 7) * 2: mf()
    srd(a, 40, "wuv")
    a(f"""
    v_bfe_u32 v5, v1, 2, 3
    v_lshlrev_b32 v5, 17, v5
    v_lshrrev_b32 v6, 5, v1
    v_lshl_add_u32 v5, v6, 13, v5
    v_and_b32 v6, 3, v1
    v_lshl_add_u32 v5, v6, 4, v5
    s_lshl_b32 s63, s61, 20
    s_lshl_b32 s64, s3, 6
    s_add_u32 s63, s63, s64
    s_add_u32 s63, s63, s65
    s_lshl_b32 s66, s3, 15
    s_add_u32 m0, s66, 24576
    """)
    def uv_dma(q):
        a(f"buffer_load_dwordx4 v5, s[40:43], s63 offen {prm.nt_wuv} lds", tag="wuv")
        a("s_add_u32 m0, m0, 1024\ns_add_u32 s63, s63, 16384")
    for q in range(prm.pre_dma): uv_dma(q)
    while nm < 32: mf()
    stamp(a, 2, prm)
    a("v_cvt_pk_bf16_f32 v76, v72, v73\nv_cvt_pk_bf16_f32 v77, v74, v75")
    a("ds_write_b16 v7, v76\nds_write_b16_d16_hi v7, v76 offset:16\nds_write_b16 v7, v77 offset:32\nds_write_b16_d16_hi v7, v77 offset:48")
    a("s_waitcnt lgkmcnt(0)\ns_barrier")
    for t in range(4): a(f"ds_read_b128 {v(84+4*t,4)}, v8 offset:{64*t}", tag=f"qb{t}")
    for t in range(4):
        a.lgwait(f"qb{t}")
        for T in range(2):
            a(f"{MF} {v(76+4*T,4)}, {v(40+16*T+4*t,4)}, {v(84+4*t,4)}, {'0' if t == 0 else v(76+4*T,4)}")
    for i in range(8): a(f"v_add_f32_dpp v{76+i}, v{76+i}, v{76+i} quad_perm:[2,3,0,1] {DPPM}")
    for i in range(8): a(f"v_add_f32_dpp v{76+i}, v{76+i}, v{76+i} row_ror:4 {DPPM}")
    for i in range(8): a(f"v_mul_f32 v{76+i}, s57, v{76+i}")
    for i in range(4): a(f"v_cvt_pk_bf16_f32 v{84+i}, v{76+2*i}, v{77+2*i}")
    a("s_mov_b64 exec, s[68:69]")
    a("buffer_store_dwordx4 v[84:87], v10, s[36:39], s56 offen sc1", tag="qst")
    a("s_mov_b64 exec, -1")
    stamp(a, 3, prm)
    for q in range(prm.pre_dma, 8): uv_dma(q)
    srd(a, 44, "wo")
    a("""
    v_lshlrev_b32 v6, 1, v3
    v_xor_b32 v6, v6, v2
    v_xor_b32 v7, 8, v6
    v_lshlrev_b32 v6, 4, v6
    v_lshlrev_b32 v7, 4, v7
    v_lshl_add_u32 v6, v3, 10, v6
    v_lshl_add_u32 v7, v3, 10, v7
    s_lshl_b32 s64, s3, 8
    s_cmp_ge_u32 s62, 112
    s_cbranch_scc1 L_w_noffn1
    """)
    srd(a, 40, "w2")
    a("s_lshl_b32 s63, s62, 14\ns_add_u32 s63, s63, s64\ns_add_u32 m0, s66, 16384")
    for q in range(4):
        a(f"buffer_load_dwordx4 v{6 + (q & 1)}, s[40:43], s63 offen {prm.nt_ffn} lds", count=False)
        a("s_add_u32 m0, m0, 1024\ns_add_u32 s63, s63, 4096")
    srd(a, 40, "w1")
    a(f"""
    v_lshrrev_b32 v10, 1, v1
    v_mul_u32_u24 v10, 3584, v10
    v_and_b32 v11, 1, v1
    v_lshl_add_u32 v10, v11, 4, v10
    s_lshl_b32 s63, s62, 5
    s_mul_i32 s56, s3, {4*32*3584}
    s_add_u32 s63, s63, s56
    s_lshl_b32 s56, s3, 12
    s_add_u32 m0, s56, {W_W1}
    """)
    for q in range(4):
        a(f"buffer_load_dwordx4 v10, s[40:43], s63 offen {prm.nt_ffn} lds", count=False)
        a(f"s_add_u32 m0, m0, 1024\ns_add_u32 s63, s63, {32*3584}")
    a("L_w_noffn1:")
    srd(a, 40, "gate")
    a("""
    v_bfe_u32 v4, v2, 2, 1
    v_lshlrev_b32 v11, 10, v4
    v_lshl_add_u32 v11, v3, 4, v11
    v_and_b32 v12, 1, v1
    v_lshlrev_b32 v12, 6, v12
    """)
    for t in range(16): a(f"buffer_load_dwordx4 {v(128+4*t,4)}, v11, s[32:35], 0 offen offset:{64*t}", tag="xf")
    a("buffer_load_dwordx4 v[16:19], v9, s[32:35], 0 offen\nbuffer_load_dwordx4 v[20:23], v9, s[32:35], 0 offen offset:1024\nbuffer_load_dwordx4 v[24:27], v9, s[40:43], 0 offen", tag="gt")
    a("buffer_load_dword v101, v12, s[48:51], 0 offen offset:128 sc1", tag="chkA")
    if prm.tlbw:
        a(f"s_mul_i32 s56, s62, {PSTR}\ns_add_u32 s56, s56, {WS_P + 32768}")
        a("buffer_load_dword v102, off, s[36:39], s56", tag="tlb")
    a("s_lshl_b32 s56, s60, 17\ns_add_u32 s56, s56, s64")
    a("s_lshl_b32 s57, s61, 15" if prm.rot else "s_mov_b32 s57, 0")
    def wo_quarter(i):
        a(f"s_add_u32 s63, s56, s57\ns_add_u32 m0, s66, {8192*i}\ns_add_u32 s57, s57, 32768\ns_and_b32 s57, s57, 0x1ffff")
        for q in range(8):
            a(f"buffer_load_dwordx4 v{6 + ((q >> 1) & 1)}, s[44:47], s63 offen {prm.nt_wo} lds", tag=f"wo{i}")
            if q < 7: a("s_add_u32 m0, m0, 1024\ns_add_u32 s63, s63, 4096")
    wo_quarter(0); wo_quarter(1)
    a("""
    v_lshrrev_b32 v13, 2, v2
    v_lshl_add_u32 v8, v3, 3, v13
    v_and_b32 v10, 3, v2
    v_lshlrev_b32 v11, 6, v8
    v_lshl_add_u32 v11, v10, 3, v11
    v_add_u32 v11, s66, v11
    v_and_b32 v14, 1, v3
    v_lshl_add_u32 v14, v14, 2, v13
    v_lshlrev_b32 v14, 1, v14
    v_lshrrev_b32 v15, 1, v10
    v_xor_b32 v14, v14, v15
    v_lshlrev_b32 v14, 4, v14
    v_and_b32 v15, 1, v10
    v_lshl_add_u32 v14, v15, 3, v14
    v_add_u32 v14, s66, v14
    v_lshl_add_u32 v104, v8, 8, v14
    v_lshl_add_u32 v13, v3, 2, v13
    v_lshl_add_u32 v112, v13, 8, v14
    """)
    for p in range(1, 8): a(f"v_xor_b32 v{104+p}, {32*p}, v104\nv_xor_b32 v{112+p}, {32*p}, v112")
    a.vmwait("xf")
    for T in range(2):
        for t in range(4):
            for e in range(2):
                a(f"ds_read_b64_tr_b16 {ag(128+16*T+4*t+2*e,2)}, v11 offset:{24576 + 2048*t + 256*e + 32*T}", tag="uvf")
            if T == 1 and t == 1: a.lgwait("uvf")
    for p in range(8): a(f"ds_read_b64_tr_b16 {v(56+2*p,2)}, v{112+p} offset:16384", tag="w2f")
    a("s_waitcnt lgkmcnt(0)\ns_barrier")
    wo_quarter(2); wo_quarter(3)
    a.vmwait("chkA")
    for b in range(2):
        for i in range(4): a(f"v_dot2_f32_bf16 v{28+b}, v{16+4*b+i}, v{24+i}, {'0' if i == 0 else f'v{28+b}'}")
    allreduce(a, "v_add_f32", [28, 29], [30, 31])
    a(f"s_mov_b32 s57, {f32(-LOG2E)}")
    for b in range(2): rnd_bf16(a, 28 + b)
    for b in range(2): a(f"v_mul_f32 v{28+b}, s57, v{28+b}")
    for b in range(2): a(f"v_exp_f32 v{28+b}, v{28+b}")
    for b in range(2): a(f"v_add_f32 v{28+b}, 1.0, v{28+b}")
    for b in range(2): a(f"v_rcp_f32 v{28+b}, v{28+b}")
    for b in range(2): rnd_bf16(a, 28 + b)
    for b in range(2): a(f"v_sub_f32 v{30+b}, 1.0, v{28+b}")
    for b in range(2): rnd_bf16(a, 30 + b)
    a("""
    v_cmp_eq_u32 vcc, 1, v4
    s_cmp_ge_u32 s3, 2
    s_cselect_b64 s[58:59], -1, 0
    v_cndmask_b32 v30, v30, v31, vcc
    v_cndmask_b32 v103, v28, v29, s[58:59]
    """)
    a("s_cmp_ge_u32 s62, 112\ns_cbranch_scc1 L_w_noffn2")
    a(f"v_lshlrev_b32 v12, 5, v8\nv_lshl_add_u32 v12, v10, 3, v12\nv_add_u32 v12, {W_W1}, v12")
    for t in range(16):
        for e in range(2): a(f"ds_read_b64_tr_b16 {v(192+4*t+2*e,2)}, v12 offset:{1024*t + 128*e}", tag=f"w1_{t}")
        if t % 4 == 3: a.lgwait(f"w1_{t-2}")
    a.lg0()
    for t in range(16): a(f"{MF} v[16:19], {v(192+4*t,4)}, {v(128+4*t,4)}, {'0' if t == 0 else 'v[16:19]'}")
    a("v_cvt_pk_bf16_f32 v20, v16, v17\nv_cvt_pk_bf16_f32 v21, v18, v19")
    a("v_lshlrev_b32 v16, 16, v20\nv_and_b32 v17, 0xffff0000, v20\nv_lshlrev_b32 v18, 16, v21\nv_and_b32 v19, 0xffff0000, v21")
    for i in range(4): a(f"v_mul_f32 v{20+i}, s57, v{16+i}")
    for i in range(4): a(f"v_exp_f32 v{20+i}, v{20+i}")
    for i in range(4): a(f"v_add_f32 v{20+i}, 1.0, v{20+i}")
    for i in range(4): a(f"v_rcp_f32 v{20+i}, v{20+i}")
    for i in range(4): a(f"v_mul_f32 v{16+i}, v{16+i}, v{20+i}")
    a("v_cvt_pk_bf16_f32 v20, v16, v17\nv_cvt_pk_bf16_f32 v21, v18, v19")
    for p in range(8): a(f"v_mfma_f32_16x16x16_bf16 {v(192+4*p,4)}, v[20:21], {v(56+2*p,2)}, 0")
    a("v_and_b32 v16, 1, v3\nv_cmp_eq_u32 vcc, 1, v16\nv_sub_f32 v16, 1.0, v28\nv_sub_f32 v17, 1.0, v29")
    rnd_bf16(a, 16); rnd_bf16(a, 17)
    a("v_cndmask_b32 v16, v16, v17, vcc")
    for p in range(8): a(f"v_mul_f32 v{192+4*p}, v16, v{192+4*p}")
    a("s_branch L_w_ffnd\nL_w_noffn2:")
    for p in range(8): a(f"v_mov_b32 v{192+4*p}, 0")
    a("L_w_ffnd:")
    for i in range(4):
        a.vmwait(f"wo{i}")
        for p in range(8):
            for e in range(2):
                a(f"ds_read_b64_tr_b16 {ag(16*p+4*i+2*e,2)}, v{104+p} offset:{8192*i + 1024*e}", tag="wof")
            if p == 3: a.lgwait("wof")
        a.lg0()
    a(f"""
    s_lshr_b32 s63, s3, 1
    s_lshl_b32 s63, s63, 14
    s_lshl_b32 s64, s60, 3
    s_add_u32 s63, s63, s64
    s_add_u32 s63, s63, {WS_S}
    v_lshlrev_b32 v4, 8, v1
    s_and_b32 s64, s3, 1
    s_lshl_b32 s64, s64, 7
    v_lshl_add_u32 v5, v3, 5, s64
    v_lshlrev_b32 v6, 4, v2
    v_lshl_add_u32 v6, v3, 11, v6
    s_mul_i32 s64, s62, {PSTR}
    s_lshl_b32 s66, s3, 13
    s_add_u32 s64, s64, s66
    s_add_u32 s64, s64, {WS_P}
    s_mul_i32 s66, s3, {XROW}
    v_and_b32 v7, 7, v2
    v_lshlrev_b32 v7, 1, v7
    v_lshl_add_u32 v7, v3, 6, v7
    v_add_u32 v7, s66, v7
    v_add_u32 v7, {W_OX}, v7
    v_and_b32 v8, 3, v2
    v_mul_u32_u24 v8, {XROW}, v8
    v_lshl_add_u32 v8, v3, 4, v8
    v_add_u32 v8, {W_OX}, v8
    v_bfe_u32 v10, v2, 1, 1
    v_mul_u32_u24 v10, {XROW}, v10
    v_lshl_add_u32 v10, v3, 3, v10
    s_lshl_b32 s66, s3, 6
    v_add_u32 v10, s66, v10
    v_add_u32 v10, {W_CX}, v10
    v_bfe_u32 v11, v2, 2, 1
    v_mul_u32_u24 v11, {XROW}, v11
    v_lshl_add_u32 v11, v3, 4, v11
    v_add_u32 v11, {W_CX}, v11
    s_lshl_b32 s54, s62, 7
    s_add_u32 s54, s54, {WS_H1}
    v_mov_b32 v15, 0
    v_and_b32 v12, 1, v1
    v_lshlrev_b32 v12, 6, v12
    v_cmp_lt_u32 s[58:59], 1, v3
    """)
    for i in range(4):
        if prm.rot: a(f"s_add_u32 s66, s61, {i}\ns_and_b32 s66, s66, 3\ns_lshl_b32 s66, s66, 6\nv_add_u32 v{120+i}, s66, v11")
        else: a(f"v_add_u32 v{120+i}, {64*i}, v11")
    cnt_check(a, "L_w_chkA", 101, 12, 128, 64)
    stamp(a, 4, prm)
    flag_poll(a, "L_w_h1", 24, "s54")
    stamp(a, 5, prm)
    a("s_mov_b32 s67, 0\nL_w_spoll:")
    a("buffer_load_dwordx2 v[24:25], v4, s[36:39], s63 offen sc1")
    a(f"""
    s_add_u32 s67, s67, 1
    s_waitcnt vmcnt(0)
    v_max_u32 v26, v24, v25
    v_cmp_eq_u32 vcc, -1, v26
    s_cmp_ge_u32 s67, {SPIN}
    s_cbranch_scc1 L_w_sdone
    s_cbranch_vccnz L_w_spoll
    L_w_sdone:
    """)
    if prm.stamps: a("s_mov_b32 s92, s67")
    stamp(a, 6, prm)
    def bulk():
        for u in range(8): a(f"buffer_load_dwordx4 {v(160+4*u,4)}, v6, s[36:39], s64 offen offset:{256*u} sc1", tag=f"bk{u}")
    bulk()
    a("v_mov_b32 v26, v24")
    allreduce(a, "v_max_f32", [26], [27])
    a("v_sub_f32 v26, v24, v26\nv_exp_f32 v26, v26\nv_cvt_pk_bf16_f32 v28, v26, v26")
    for u in range(8): a(f"ds_bpermute_b32 v{40+u}, v5, v28 offset:{4*u}", tag=f"bp{u}")
    a("v_lshlrev_b32 v26, 16, v28\nv_mul_f32 v26, v26, v25")
    allreduce(a, "v_add_f32", [26], [27])
    a("v_rcp_f32 v26, v26")
    for u in range(8):
        a.lgwait(f"bp{u}")
        for p in range(4): a(f"v_perm_b32 v{128+4*u+p}, v{40+u}, v{40+u}, v{32+2*p}")
    a("v_mul_f32 v26, v26, v103")
    a("s_mov_b32 s67, 0\nL_w_bpoll:\ns_add_u32 s67, s67, 1")
    for u in range(8):
        a.vmwait(f"bk{u}")
        a(f"{MF} v[48:51], {v(160+4*u,4)}, {v(128+4*u,4)}, {'0' if u == 0 else 'v[48:51]'}")
        if u == 0: a("v_max3_u32 v27, v160, v161, v162\nv_max_u32 v27, v27, v163")
        else: a(f"v_max3_u32 v27, v27, v{160+4*u}, v{161+4*u}\nv_max3_u32 v27, v27, v{162+4*u}, v{163+4*u}")
    a(f"""
    v_cmp_eq_u32 vcc, -1, v27
    s_cbranch_vccz L_w_bdone
    s_cmp_ge_u32 s67, {SPIN}
    s_cbranch_scc1 L_w_bdone
    """)
    bulk()
    a("s_branch L_w_bpoll\nL_w_bdone:\ns_nop 2")
    stamp(a, 7, prm)
    if prm.stamps: a("s_mov_b32 s90, s67")
    def hint2(k):
        if prm.h2_at == k:
            a("s_cmp_lg_u32 s3, 3\ns_cbranch_scc1 L_w_noh2\ns_mov_b64 exec, 1")
            a("buffer_store_dword v15, off, s[36:39], s53 sc1", count=False)
            a("s_mov_b64 exec, -1\nL_w_noh2:")
    for i in range(4): a(f"v_mul_f32 v{48+i}, v26, v{48+i}")
    a("v_cvt_pk_bf16_f32 v52, v48, v49\nv_cvt_pk_bf16_f32 v53, v50, v51")
    a("ds_write_b16 v7, v52\nds_write_b16_d16_hi v7, v52 offset:16\nds_write_b16 v7, v53 offset:32\nds_write_b16_d16_hi v7, v53 offset:48")
    hint2(0)
    a("s_waitcnt lgkmcnt(0)\ns_barrier")
    for t in range(4): a(f"ds_read_b128 {v(84+4*t,4)}, v8 offset:{64*t}", tag=f"ob{t}")
    hint2(1)
    for t in range(4):
        a.lgwait(f"ob{t}")
        for T in range(2):
            a(f"{MF} {v(76+4*T,4)}, {ag(128+16*T+4*t,4)}, {v(84+4*t,4)}, {'0' if t == 0 else v(76+4*T,4)}")
    for i in range(8): a(f"v_add_f32_dpp v{76+i}, v{76+i}, v{76+i} quad_perm:[1,0,3,2] {DPPM}")
    for i in range(4): a(f"v_cvt_pk_bf16_f32 v{52+i}, v{76+2*i}, v{77+2*i}")
    a("ds_write_b64 v10, v[52:53]\nds_write_b64 v10, v[54:55] offset:32")
    a("s_waitcnt lgkmcnt(0)\ns_barrier")
    for i in range(4): a(f"ds_read_b128 {v(84+4*i,4)}, v{120+i}", tag=f"cb{i}")
    hint2(2)
    for i in range(4):
        a.lgwait(f"cb{i}")
        for p in range(8):
            a(f"{MF} {v(192+4*p,4)}, {v(84+4*i,4)}, {ag(16*p+4*i,4)}, {v(192+4*p,4)}")
    for q in range(4): a(f"v_cndmask_b32 v{52+q}, v{192+4*q}, v{208+4*q}, s[58:59]")
    a("buffer_store_dwordx4 v[52:55], v100, s[36:39], s52 offen sc1")
    stamp(a, 8, prm)
    if prm.stamps:
        a("s_waitcnt vmcnt(0)"); stamp(a, 9, prm)
    stamp_out(a, prm, 12)
    a("s_endpgm")

def gen_att(a, prm):
    a.role = "A"
    a.vm = []; a.lg = []
    a(f"""
    s_sub_u32 s61, s31, 16
    s_lshl_b32 s60, s61, 3
    s_add_u32 s60, s60, s30
    v_lshlrev_b32 v9, 4, v1
    s_lshl_b32 s62, s60, 17
    s_lshl_b32 s63, s3, 15
    s_add_u32 s62, s62, s63
    s_mul_i32 s63, s3, {16*ROW}
    s_mov_b32 m0, s63
    v_mov_b32 v12, -1
    v_mov_b32 v13, -1
    v_mov_b32 v14, -1
    v_mov_b32 v15, -1
    s_mov_b32 s57, {16*PSTR}
    v_mul_lo_u32 v46, s57, v3
    v_lshl_add_u32 v46, v2, 4, v46
    s_mul_i32 s58, s3, {PSTR}
    s_lshl_b32 s59, s60, 8
    s_add_u32 s57, s59, {WS_S}
    s_add_u32 s58, s58, s59
    s_add_u32 s58, s58, {WS_P}
    s_lshl_b32 s56, s60, 7
    s_add_u32 s56, s56, {WS_H1}
    s_waitcnt lgkmcnt(0)
    """)
    srd(a, 40, "ckv")
    nrow = 0
    def row_dma(tag):
        nonlocal nrow
        if prm.thr and prm.thr <= nrow < prm.thr_n: a.vmwait(f"row{nrow - prm.thr}")
        a(f"buffer_load_dwordx4 v9, s[40:43], s62 offen {prm.nt_ckv} lds", tag=f"row{nrow}")
        a(f"s_add_u32 m0, m0, {ROW}\ns_add_u32 s62, s62, 1024")
        nrow += 1
    def pstore(data, hg, r, tag):
        a(f"s_add_u32 s59, s58, {(16*hg + r) * 4 * PSTR}")
        a(f"buffer_store_dwordx4 {data}, v46, s[36:39], s59 offen sc1", tag=tag)
    for i in range(16):
        if i == prm.apois_at:
            srd(a, 36, "ws")
            for hg in range(2):
                for r in range(4): pstore("v[12:15]", hg, r, "pois")
            a("s_cmp_lg_u32 s3, 0\ns_cbranch_scc1 L_a_nop2\nv_lshlrev_b32 v4, 2, v1")
            a("buffer_store_dword v12, v4, s[36:39], s57 offen sc1", count=False)
            a("s_mov_b64 exec, 1")
            a("buffer_store_dword v12, off, s[36:39], s56 sc1", count=False)
            a("s_mov_b64 exec, -1\nL_a_nop2:")
        row_dma("st1")
    srd(a, 48, "dbg")
    a(f"s_add_u32 m0, s63, {A_ST2}")
    a("v_and_b32 v4, 1, v1\nv_lshlrev_b32 v4, 6, v4")
    for i in range(16):
        row_dma(f"st2_{i}")
        if i == prm.chk_at - 1:
            a("buffer_load_dword v10, v4, s[48:51], 0 offen sc1", tag="chk")
    stamp(a, 1, prm)
    a(f"""
    v_mul_u32_u24 v5, {ROW}, v2
    v_lshl_add_u32 v5, v3, 4, v5
    v_add_u32 v47, {A_Q}, v5
    v_add_u32 v5, s63, v5
    v_add_u32 v6, {A_ST2}, v5
    v_lshrrev_b32 v7, 2, v2
    v_lshl_add_u32 v7, v3, 2, v7
    v_mul_u32_u24 v7, {ROW}, v7
    v_and_b32 v8, 3, v2
    v_lshl_add_u32 v7, v8, 3, v7
    s_lshl_b32 s64, s3, 8
    v_add_u32 v7, s64, v7
    v_add_u32 v8, {A_ST2}, v7
    """)
    a.vmwait("row15")
    stamp(a, 2, prm)
    for t in range(16):
        a(f"ds_read_b128 {ag(4*t,4)}, v5 offset:{64*t}", tag="k0")
        if t == 7: a.lgwait("k0")
    a("s_barrier")
    a("""
    s_cmp_lg_u32 s3, 0
    s_cbranch_scc1 L_a_nosig
    s_and_b32 s64, s60, 1
    s_lshl_b32 s64, s64, 6
    s_add_u32 s64, s64, 128
    v_mov_b32 v11, 1
    s_mov_b64 exec, 1
    """)
    a("buffer_atomic_add v11, off, s[48:51], s64 sc1", count=False)
    a("s_mov_b64 exec, -1\nL_a_nosig:")
    n = 0
    for pq in range(8):
        for u in range(4):
            a(f"ds_read_b64_tr_b16 {ag(128+16*pq+4*u,2)}, v7 offset:{16*u*ROW + 32*pq}", tag="v0")
            n += 1
            if n % 8 == 0: a.lgwait("v0")
    a(f"""
    s_lshr_b32 s64, s60, 6
    s_lshl_b32 s64, s64, 15
    s_lshl_b32 s65, s3, 13
    s_add_u32 s64, s64, s65
    s_add_u32 s65, s64, 4096
    s_mul_i32 s66, s3, {8*QROW}
    v_add_u32 v11, s66, v9
    v_and_b32 v12, 31, v1
    v_lshlrev_b32 v12, 4, v12
    s_lshl_b32 s52, s3, 2
    s_add_u32 s52, s52, {A_MX}
    v_add_u32 v12, s52, v12
    v_lshlrev_b32 v13, 4, v2
    v_add_u32 v13, {A_MX}, v13
    s_lshl_b32 s52, s3, 11
    s_add_u32 s52, s52, {A_PB}
    v_add_u32 v14, s52, v9
    v_add_u32 v15, {A_PB}, v9
    s_and_b32 s52, s3, 1
    s_lshl_b32 s53, s52, 10
    v_add_u32 v5, s53, v15
    s_lshl_b32 s53, s52, 7
    s_add_u32 s57, s57, s53
    s_cmp_eq_u32 s52, 1
    s_cselect_b64 s[54:55], -1, 0
    v_lshlrev_b32 v7, 3, v2
    v_mov_b32 v40, 0x3f803f80
    v_mov_b32 v41, 0x3f803f80
    v_mov_b32 v42, 0x3f803f80
    v_mov_b32 v43, 0x3f803f80
    v_mov_b32 v39, 0
    """)
    a("s_waitcnt lgkmcnt(0)\ns_barrier")
    a.vmwait("chk") if prm.chk_at > 16 - prm.qw else a.vmwait(f"row{31-prm.qw}")
    cnt_check(a, "L_a_chk", 10, 4, 0, 64)
    if prm.stamps: a("s_mov_b32 s92, s67")
    a.vmwait(f"row{31-prm.qw}")
    stamp(a, 3, prm)
    def q_dma(flags):
        a("s_mov_b32 m0, s66\ns_nop 0")
        for i in range(8):
            a(f"buffer_load_dwordx4 v9, s[36:39], s{64 + i//4} offen offset:{(i%4)*1024} {flags} lds", tag="q")
            if i < 7: a(f"s_add_u32 m0, m0, {QROW - 1024 if i != 3 else QROW + 3072}\ns_nop 0")
    q_dma(prm.q_first)
    a.vmwait("row31")
    stamp(a, 4, prm)
    for t in range(16):
        a(f"ds_read_b128 {ag(64+4*t,4)}, v6 offset:{64*t}", tag="k1")
        if t == 7: a.lgwait("k1")
    a("s_mov_b32 s67, 0")
    a("L_a_qchk:")
    a.vm0()
    for i in range(8): a(f"ds_read_b128 {v(128+4*i,4)}, v11 offset:{QROW*i}", tag=f"qo{i}")
    a("s_add_u32 s67, s67, 1")
    for i in range(8):
        a.lgwait(f"qo{i}")
        if i == 0: a("v_max3_u32 v16, v128, v129, v130\nv_max_u32 v16, v16, v131")
        else: a(f"v_max3_u32 v16, v16, v{128+4*i}, v{129+4*i}\nv_max3_u32 v16, v16, v{130+4*i}, v{131+4*i}")
    a(f"""
    v_cmp_eq_u32 vcc, -1, v16
    s_cbranch_vccz L_a_qok
    s_cmp_ge_u32 s67, {SPIN}
    s_cbranch_scc1 L_a_qok
    """)
    q_dma("sc1")
    a("s_branch L_a_qchk\nL_a_qok:")
    if prm.stamps: a("s_mov_b32 s98, s67")
    a("s_barrier")
    stamp(a, 5, prm)
    a.lg = []
    def hint1(k):
        if prm.h1_at == k:
            a("s_cmp_lg_u32 s3, 3\ns_cbranch_scc1 L_a_noh1\ns_mov_b64 exec, 1")
            a("buffer_store_dword v39, off, s[36:39], s56 sc1", count=False)
            a("s_mov_b64 exec, -1\nL_a_noh1:")
    def qrd(t):
        for hg in range(2): a(f"ds_read_b128 {v(128+8*t+4*hg,4)}, v47 offset:{16*hg*QROW + 64*t}", tag=f"q{t}_{hg}")
    def vrd(k):
        pq, u = k // 4, k % 4
        a(f"ds_read_b64_tr_b16 {ag(128+16*pq+4*u+2,2)}, v8 offset:{16*u*ROW + 32*pq}", tag="v1")
    AH = prm.ah
    for t in range(AH): qrd(t)
    nv = 0
    for t in range(16):
        for hg in range(2):
            a.lgwait(f"q{t}_{hg}")
            for kt in range(2):
                acc = 16 + 8 * kt + 4 * hg
                a(f"{MF} {v(acc,4)}, {ag(64*kt+4*t,4)}, {v(128+8*t+4*hg,4)}, {'0' if t == 0 else v(acc,4)}")
                if t + AH < 16:
                    if kt == 0: a(f"ds_read_b128 {v(128+8*(t+AH)+4*hg,4)}, v47 offset:{16*hg*QROW + 64*(t+AH)}", tag=f"q{t+AH}_{hg}")
                    elif t >= 4: vrd(nv); nv += 1
                elif nv < 32:
                    vrd(nv); nv += 1
        hint1(t)
    while nv < 32: vrd(nv); nv += 1
    stamp(a, 6, prm)
    hint1(16)
    S = lambda kt, hg, r: 16 + 8 * kt + 4 * hg + r
    for hg in range(2): a(f"v_max3_f32 v{32+hg}, v{S(0,hg,0)}, v{S(0,hg,1)}, v{S(0,hg,2)}")
    for hg in range(2): a(f"v_max3_f32 v{32+hg}, v{32+hg}, v{S(0,hg,3)}, v{S(1,hg,0)}")
    for hg in range(2): a(f"v_max3_f32 v{32+hg}, v{32+hg}, v{S(1,hg,1)}, v{S(1,hg,2)}")
    for hg in range(2): a(f"v_max_f32 v{32+hg}, v{32+hg}, v{S(1,hg,3)}")
    a("""
    v_permlane16_swap_b32 v32, v33
    v_max_f32 v32, v32, v33
    v_mov_b32 v33, v32
    v_permlane32_swap_b32 v32, v33
    v_max_f32 v32, v32, v33
    ds_write_b32 v12, v32
    s_waitcnt lgkmcnt(0)
    s_barrier
    ds_read_b128 v[32:35], v13
    ds_read_b128 v[48:51], v13 offset:256
    """)
    hint1(17)
    a("""
    s_waitcnt lgkmcnt(1)
    v_max3_f32 v32, v32, v33, v34
    v_max_f32 v32, v32, v35
    """)
    for kt in range(2):
        for r in range(4): a(f"v_sub_f32 v{S(kt,0,r)}, v{S(kt,0,r)}, v32")
    a("s_waitcnt lgkmcnt(0)\nv_max3_f32 v33, v48, v49, v50\nv_max_f32 v33, v33, v51")
    for hg in range(2):
        if hg == 1:
            for kt in range(2):
                for r in range(4): a(f"v_sub_f32 v{S(kt,hg,r)}, v{S(kt,hg,r)}, v33")
        for kt in range(2):
            for r in range(4): a(f"v_exp_f32 v{S(kt,hg,r)}, v{S(kt,hg,r)}")
        for kt in range(2):
            for r2 in range(2): a(f"v_cvt_pk_bf16_f32 v{48+4*hg+2*kt+r2}, v{S(kt,hg,2*r2)}, v{S(kt,hg,2*r2+1)}")
        a(f"ds_write_b128 v14, {v(48+4*hg,4)} offset:{1024*hg}")
    a("v_cndmask_b32 v44, v32, v33, s[54:55]")
    a("s_waitcnt lgkmcnt(0)\ns_barrier")
    a.lg = []
    for hg in range(2):
        for u in range(4): a(f"ds_read_b128 {v(128+8*u+4*hg,4)}, v15 offset:{(2*u+hg)*1024}", tag=f"p{u}_{hg}")
        if hg == 0:
            for u in range(4): a(f"ds_read_b128 {v(160+4*u,4)}, v5 offset:{2048*u}", tag=f"pl{u}")
    hint1(18)
    stamp(a, 7, prm)
    O = lambda pq, hg: 64 + 8 * pq + 4 * hg
    def cvt(hg, r, q):
        a(f"v_cvt_pk_bf16_f32 v{176+16*hg+4*r+q}, v{O(2*q,hg)+r}, v{O(2*q+1,hg)+r}")
    k = 0
    for hg in range(2):
        for u in range(4):
            a.lgwait(f"p{u}_{hg}")
            for pq in range(8):
                a(f"{MF} {v(O(pq,hg),4)}, {v(128+8*u+4*hg,4)}, {ag(128+16*pq+4*u,4)}, {'0' if u == 0 else v(O(pq,hg),4)}")
                if hg == 1:
                    j = 8 * u + pq - 2
                    if 0 <= j < 20:
                        r, st = j // 5, j % 5
                        if st < 4: cvt(0, r, st)
                        else: pstore(v(176 + 4 * r, 4), 0, r, "pst")
            if hg == 0 and u == 0:
                for uu in range(4):
                    a.lgwait(f"pl{uu}")
                    a(f"{MF} v[36:39], v[40:43], {v(160+4*uu,4)}, {'0' if uu == 0 else 'v[36:39]'}")
            if hg == 0 and u == 1:
                a("v_mov_b32 v45, v36\ns_cmp_ge_u32 s3, 2\ns_cbranch_scc1 L_a_nost\ns_mov_b64 exec, 0xffff")
                a("buffer_store_dwordx2 v[44:45], v7, s[36:39], s57 offen sc1", count=False)
                a("s_mov_b64 exec, -1\nL_a_nost:")
    for r in range(4):
        for q in range(4): cvt(1, r, q)
        pstore(v(192 + 4 * r, 4), 1, r, "pst")
    stamp(a, 8, prm)
    a("s_cmp_ge_u32 s60, 64\ns_cbranch_scc1 L_a_end\ns_cmp_lg_u32 s3, 0\ns_cbranch_scc1 L_a_end")
    srd(a, 44, "out")
    a(f"""
    s_lshr_b32 s52, s60, 1
    s_lshl_b32 s54, s52, 14
    s_and_b32 s53, s60, 1
    s_lshl_b32 s55, s53, 6
    s_add_u32 s54, s54, s55
    s_add_u32 s54, s54, {WS_A}
    s_add_u32 s55, s54, 4096
    s_add_u32 s56, s54, 8192
    s_add_u32 s57, s54, 12288
    v_lshrrev_b32 v5, 2, v1
    v_lshlrev_b32 v5, 7, v5
    v_and_b32 v4, 3, v1
    v_lshl_add_u32 v5, v4, 4, v5
    v_lshlrev_b32 v4, 1, v4
    v_lshl_add_u32 v4, v3, 5, v4
    s_lshr_b32 s58, s52, 1
    s_lshl_b32 s58, s58, 7
    s_and_b32 s59, s52, 1
    s_lshl_b32 s59, s59, 4
    s_add_u32 s58, s58, s59
    s_lshl_b32 s59, s53, 3
    s_add_u32 s58, s58, s59
    s_lshl_b32 s59, s60, 8
    s_add_u32 s59, s59, {WS_H2}
    s_mov_b32 s68, 0x000f000f
    s_mov_b32 s69, 0x000f000f
    """)
    flag_poll(a, "L_f_h2", 30, "s59")
    stamp(a, 9, prm)
    lab = "L_f_a"
    a(f"s_mov_b32 s67, 0\n{lab}:")
    for u in range(8): a(f"buffer_load_dwordx4 {v(64+4*u,4)}, v5, s[36:39], s{54 + u//2} offen offset:{2048*(u%2)} sc1", tag=f"{lab}{u}")
    a("s_add_u32 s67, s67, 1")
    for u in range(8):
        a.vmwait(f"{lab}{u}")
        if u == 0: a("v_max3_u32 v30, v64, v65, v66\nv_max_u32 v30, v30, v67")
        else: a(f"v_max3_u32 v30, v30, v{64+4*u}, v{65+4*u}\nv_max3_u32 v30, v30, v{66+4*u}, v{67+4*u}")
        if u == 1:
            for i in range(4): a(f"v_add_f32 v{32+i}, v{64+i}, v{68+i}")
        if u > 1:
            for i in range(4): a(f"v_add_f32 v{32+i}, v{32+i}, v{64+4*u+i}")
    a(f"""
    v_cmp_eq_u32 vcc, -1, v30
    s_cmp_ge_u32 s67, {SPIN}
    s_cbranch_scc1 {lab}_ok
    s_cbranch_vccnz {lab}
    {lab}_ok:
    """)
    for sh in (4, 8):
        for i in range(4): a(f"v_add_f32_dpp v{32+i}, v{32+i}, v{32+i} row_ror:{sh} {DPPM}")
    a(f"""
    v_permlane16_swap_b32 v32, v33
    v_permlane16_swap_b32 v34, v35
    v_add_f32 v32, v32, v33
    v_add_f32 v34, v34, v35
    v_permlane32_swap_b32 v32, v34
    v_add_f32 v32, v32, v34
    v_cvt_pk_bf16_f32 v37, v32, v32
    s_mov_b64 exec, s[68:69]
    """)
    if prm.stamps: a("s_mov_b32 s94, s67")
    if prm.hold:
        a(f"""
        L_hold:
        s_memrealtime s[52:53]
        s_waitcnt lgkmcnt(0)
        s_sub_u32 s52, s52, s100
        s_cmp_lt_u32 s52, {prm.hold}
        s_cbranch_scc1 L_hold
        """)
    a("buffer_store_short v37, v4, s[44:47], s58 offen")
    a("L_a_end:")
    stamp(a, 13, prm)
    stamp_out(a, prm, 15)
    a("s_endpgm")

def gen(prm):
    a = Asm(); a.role = "X"
    a("s_cmp_ge_u32 s2, 256\ns_cbranch_scc1 L_exit")
    stamp(a, 0, prm)
    if prm.hold: a("s_memrealtime s[100:101]")
    a("""
    s_load_dwordx16 s[4:19], s[0:1], 0
    s_load_dwordx8 s[20:27], s[0:1], 64
    s_load_dwordx2 s[28:29], s[0:1], 96
    v_lshrrev_b32 v1, 6, v0
    s_and_b32 s30, s2, 7
    v_readfirstlane_b32 s3, v1
    s_lshr_b32 s31, s2, 3
    v_and_b32 v1, 63, v0
    v_and_b32 v2, 15, v0
    v_bfe_u32 v3, v0, 4, 2
    """)
    if prm.stamps:
        for i in range(1, 15): a(f"s_mov_b32 s{70+2*i}, 0")
    if prm.icpf:
        a("""
        s_and_b32 s32, s31, 7
        s_or_b32 s32, s32, s3
        s_cmp_lg_u32 s32, 0
        s_cbranch_scc1 L_nopf
        s_getpc_b64 s[32:33]
        L_pc:
        s_mov_b32 s34, L_exit-L_pc
        v_lshlrev_b32 v4, 7, v1
        """)
        for k in range(2):
            a("v_min_u32 v5, s34, v4")
            a("global_load_dword v127, v5, s[32:33]", count=False)
            a("v_add_u32 v4, 0x2000, v4")
        a("L_nopf:")
    a("s_cmp_lt_u32 s31, 16\ns_cbranch_scc1 L_wgt")
    gen_att(a, prm)
    a.vm = []; a.lg = []
    gen_wgt(a, prm)
    a("L_exit:\ns_endpgm")
    return a

HEADER = """Fused decode step: latent-KV attention (weights absorbed) + SiLU FFN + sigmoid gate.
One persistent launch, 256 workgroups: 128 weight-side workgroups and 128 attention workgroups."""

def emit(prm, path):
    a = gen(prm)
    txt = kernel_file([dict(name=NAME + "_kernel", body=a.text(), grid=256, block=256, lds=LDS_BYTES, vgpr=512, accum=256, sgpr=102)], HEADER)
    open(path, "w").write(txt)
    return a

if __name__ == "__main__":
    prm = P()
    out = sys.argv[1] if len(sys.argv) > 1 else "k.s"
    for kv in sys.argv[2:]:
        k, val = kv.split("=", 1)
        cur = getattr(prm, k)
        setattr(prm, k, (val == "1") if isinstance(cur, bool) else val.replace("_", " ") if isinstance(cur, str) else int(val))
    a = emit(prm, out)
    print("instrs", len(a.ins), "nops", a.nnop, "lds", LDS_BYTES)
```

```python
import sys, math, struct
from asm2 import *

WS_Q = 0x0
WS_S = 0x10000
WS_H0 = 0x20000
WS_H1 = 0x24000
WS_H2 = 0x28000
WS_E = 0x30000
WS_A = 0x80000
WS_F = 0x100000
WS_P = 0x200000
PSTR = 32768 + 128
SZ = dict(x=2048, ckv=16 << 20, wq=4 << 20, wuk=4 << 20, wuv=4 << 20, wo=4 << 20, w1=512 * 1792 * 2, w2=512 * 1792 * 2, gate=1024, out=2048, dbg=256, ws=WS_BYTES)
PTR = dict(x=4, ckv=6, wq=8, wuk=10, wuv=12, wo=14, w1=18, w2=20, gate=22, out=24, dbg=26, ws=28)
SPIN = 30000
ROW = 1056
A_ST1 = 0; A_ST2 = 64 * ROW; A_Q = 0; QROW = 1056
A_PB = 128 * ROW; A_MX = A_PB + 8192; A_X = A_MX + 512; A_END = A_X + 2048; A_F = 33792
W_QX = 131072; XROW = 272; W_OX = W_QX + 8 * XROW; W_CX = W_OX + 4 * XROW; W_HX = W_CX + 2 * XROW + 32; W_END = W_HX + 4096
LDS_BYTES = max(A_END, W_END)
LOG2E = math.log2(math.e)

class P:
    stamps = False
    nt_ckv = ""; nt_wq = ""; nt_wuk = ""; nt_wuv = ""; nt_wo = ""; nt_ffn = ""
    qw = 4
    apat = "r2.w1.r2.w3.r2.w5.r26"
    h0_at = 24
    hmap = 1
    rot = True
    run0 = 10
    wuk_at = 7
    lag = 10
    icpf = True
    q_first = "sc1"
    ah = 4
    h1_at = 24
    h2_at = 2
    p2 = False
    wpat = "Q.ad.H.T.o0.uv.t5.o1.o3.t6.f0.uf.o2.t7.f1.f3.t8.f2.fin"
    fpf_at = 0
    merge = True
    fdma = "p"
    probe = ""

def v(a, n=1): return f"v{a}" if n == 1 else f"v[{a}:{a+n-1}]"
def ag(a, n=1): return f"a{a}" if n == 1 else f"a[{a}:{a+n-1}]"
def f32(x): return hex(struct.unpack("<I", struct.pack("<f", x))[0])

def srd(a, d, name):
    p = PTR[name]
    a(f"s_mov_b32 s{d}, s{p}\ns_mov_b32 s{d+1}, s{p+1}\ns_mov_b32 s{d+2}, {SZ[name]}\ns_mov_b32 s{d+3}, 0x20000")

def stamp2(a, i, prm):
    if prm.p2: a(f"s_memrealtime s[{70+2*i}:{71+2*i}]")

def stamp(a, i, prm):
    if prm.p2 and a.role == 'W' and 5 <= i <= 9: return
    if prm.stamps or prm.probe == f"{a.role}{i}" or (prm.probe and i == 0): a(f"s_memrealtime s[{70+2*i}:{71+2*i}]")

def stamp_out(a, prm, nst):
    if prm.probe:
        pi = int(prm.probe[1:])
        lab = f"L_pr_{a.role}"
        a(f"s_mov_b64 exec, 1\ns_waitcnt lgkmcnt(0)\ns_cmp_lg_u32 s3, 0\ns_cbranch_scc1 {lab}\ns_not_b32 s30, s70\nv_mov_b32 v4, s30")
        a("buffer_atomic_umax v4, off, s[48:51], 0 offset:16 sc1")
        if prm.probe[0] == a.role:
            a(f"v_mov_b32 v5, s{70+2*pi}\nbuffer_atomic_umax v5, off, s[48:51], 0 offset:20 sc1")
        a(f"s_waitcnt vmcnt(0)\nv_mov_b32 v4, 1\nbuffer_atomic_add v4, off, s[48:51], 0 offset:24 sc1")
        if a.role == "A":
            a(f"""
            s_cmp_lg_u32 s60, 0
            s_cbranch_scc1 {lab}
            s_mov_b32 s31, 0
            L_pr_w:
            buffer_load_dwordx3 v[8:10], off, s[48:51], 0 offset:16 sc1
            s_add_u32 s31, s31, 1
            s_waitcnt vmcnt(0)
            v_readfirstlane_b32 s32, v10
            s_cmp_ge_u32 s31, {SPIN}
            s_cbranch_scc1 L_pr_g
            s_cmp_lt_u32 s32, 256
            s_cbranch_scc1 L_pr_w
            L_pr_g:
            v_readfirstlane_b32 s32, v8
            v_readfirstlane_b32 s33, v9
            s_not_b32 s32, s32
            s_sub_u32 s33, s33, s32
            s_min_u32 s33, s33, 5000
            s_mul_i32 s33, s33, 10
            s_add_u32 s33, s33, 3000
            L_pr_h:
            s_memrealtime s[52:53]
            s_waitcnt lgkmcnt(0)
            s_sub_u32 s52, s52, s32
            s_cmp_lt_u32 s52, s33
            s_cbranch_scc1 L_pr_h
            """)
        a(f"{lab}:")
    if not prm.stamps: return
    a(f"""
    s_mov_b64 exec, -1
    s_waitcnt lgkmcnt(0)
    s_lshl_b32 s30, s2, 2
    s_add_u32 s30, s30, s3
    s_lshl_b32 s30, s30, 6
    s_add_u32 s30, s30, {STAMP_OFF}
    v_mov_b32 v4, 0
    """)
    for i in range(nst):
        a(f"v_mov_b32 v5, s{70+2*i}")
        a(f"buffer_store_dword v5, v4, s[36:39], s30 offen offset:{4*i}")

def allreduce(a, op, xs, ts):
    for sh in (8, 4, 2, 1):
        for x in xs: a(f"{op}_dpp v{x}, v{x}, v{x} row_ror:{sh} row_mask:0xf bank_mask:0xf")
    for sw in ("16", "32"):
        for x, t in zip(xs, ts): a(f"v_mov_b32 v{t}, v{x}")
        for x, t in zip(xs, ts): a(f"v_permlane{sw}_swap_b32 v{x}, v{t}")
        for x, t in zip(xs, ts): a(f"{op} v{x}, v{x}, v{t}")

def rnd_bf16(a, x):
    a(f"v_cvt_pk_bf16_f32 v{x}, v{x}, v{x}\nv_and_b32 v{x}, 0xffff0000, v{x}")

def cnt_check(a, lab, vreg, vaddr, off, target, cntreg="s67"):
    a(f"""
    s_mov_b32 {cntreg}, 0
    {lab}:
    v_cmp_gt_u32 vcc, {target}, v{vreg}
    s_cbranch_vccz {lab}_ok
    s_add_u32 {cntreg}, {cntreg}, 1
    s_cmp_ge_u32 {cntreg}, {SPIN}
    s_cbranch_scc1 {lab}_ok
    """)
    a(f"buffer_load_dword v{vreg}, v{vaddr}, s[48:51], 0 offen offset:{off} sc1", count=False)
    a(f"s_waitcnt vmcnt(0)\ns_branch {lab}\n{lab}_ok:")

def flag_poll(a, lab, vreg, soff):
    a(f"s_mov_b32 s67, 0\n{lab}:")
    a(f"buffer_load_dword v{vreg}, off, s[36:39], {soff} sc1")
    a(f"""
    s_add_u32 s67, s67, 1
    s_waitcnt vmcnt(0)
    v_cmp_ne_u32 vcc, {EP}, v{vreg}
    s_cmp_ge_u32 s67, {SPIN}
    s_cbranch_scc1 {lab}_ok
    s_cbranch_vccnz {lab}
    {lab}_ok:
    """)

SWO = "s30"; EP = "s16"; TN = "s17"; TQ = ["s99", "s100", "s101", "s31"]

def epoch_load(a):
    a(f"""
    v_mul_u32_u24 v125, {42*PSTR}, v1
    v_add_u32 v125, {WS_P + 32768}, v125
    v_mov_b32 v126, {WS_E}
    v_cmp_gt_u32 vcc, 4, v1
    v_cndmask_b32 v125, v126, v125, vcc
    """)
    a("buffer_load_dword v126, v125, s[36:39], 0 offen sc1", tag="ep")

def epoch_calc(a):
    a(f"""
    v_readlane_b32 {EP}, v126, 8
    s_add_u32 {TN}, {EP}, 1
    s_and_b32 {TN}, {TN}, 0x3f
    s_andn2_b32 s99, 3, {TN}
    s_lshl_b32 s99, s99, 6
    s_or_b32 {TN}, {TN}, s99
    s_add_u32 {EP}, {EP}, 0x100
    s_andn2_b32 {EP}, {EP}, 0xff
    s_or_b32 {EP}, {EP}, {TN}
    """)
    for q in range(4):
        a(f"s_bfe_u32 s67, {TN}, {hex((1 << 16) | (2*q+1))}\ns_lshl_b32 s67, s67, 16\ns_bfe_u32 {TQ[q]}, {TN}, {hex((1 << 16) | (2*q))}\ns_or_b32 {TQ[q]}, {TQ[q]}, s67")

def tagchk(a, acc, base, first, fp32=False):
    for q in range(4):
        t = TN if fp32 else TQ[q]
        if first and q == 0: a(f"v_xor_b32 v{acc}, {t}, v{base}")
        else: a(f"v_bitop3_b32 v{acc}, v{acc}, v{base+q}, {t} bitop3:0xf6")

MF = "v_mfma_f32_16x16x32_bf16"
DPPM = "row_mask:0xf bank_mask:0xf"

def gen_wgt(a, prm):
    a.role = "W"
    a("L_wgt:")
    if prm.hmap == 0: a("s_lshr_b32 s60, s31, 2\ns_lshl_b32 s60, s60, 3\ns_add_u32 s60, s60, s30")
    else: a("s_lshr_b32 s60, s31, 2\ns_lshl_b32 s61, s30, 2\ns_add_u32 s60, s60, s61")
    a("""
    s_and_b32 s61, s31, 3
    s_lshl_b32 s62, s60, 2
    s_add_u32 s62, s62, s61
    v_lshrrev_b32 v4, 3, v2
    v_lshlrev_b32 v4, 10, v4
    v_lshl_add_u32 v4, v3, 6, v4
    v_lshlrev_b32 v5, 4, v2
    v_lshl_add_u32 v5, v3, 18, v5
    v_lshlrev_b32 v6, 1, v3
    v_xor_b32 v6, v6, v2
    v_xor_b32 v7, 8, v6
    v_lshlrev_b32 v6, 4, v6
    v_lshlrev_b32 v7, 4, v7
    v_lshl_add_u32 v122, v3, 13, v6
    v_lshl_add_u32 v123, v3, 13, v7
    v_lshl_add_u32 v120, v3, 10, v6
    v_lshl_add_u32 v121, v3, 10, v7
    v_lshlrev_b32 v9, 4, v1
    s_lshl_b32 s64, s3, 20
    s_lshl_b32 s65, s60, 8
    s_add_u32 s64, s64, s65
    s_lshl_b32 s54, s61, 20
    s_lshl_b32 s55, s3, 18
    s_add_u32 s54, s54, s55
    s_add_u32 s54, s54, s65
    s_lshl_b32 s55, s3, 15
    s_mov_b32 m0, s55
    """)
    a("s_lshl_b32 s66, s61, 16" if prm.rot else "s_mov_b32 s66, 0")
    a("s_lshl_b32 s63, s3, 8")
    for u in range(4):
        if prm.rot: a(f"s_add_u32 s{56+u}, s61, {u}\ns_and_b32 s{56+u}, s{56+u}, 3\ns_lshl_b32 s{56+u}, s{56+u}, 4\ns_add_u32 s{56+u}, s{56+u}, s63")
        else: a(f"s_add_u32 s{56+u}, s63, {16*u}")
    a("s_waitcnt lgkmcnt(0)")
    srd(a, 40, "wq"); srd(a, 44, "wuk")
    def wq_load(t):
        a(f"s_add_u32 s63, s64, s66")
        a(f"buffer_load_dwordx4 {ag(4*t,4)}, v5, s[40:43], s63 offen {prm.nt_wq}", tag=f"wq{t}")
        a("s_add_u32 s66, s66, 8192\ns_and_b32 s66, s66, 0x3ffff")
    def wuk_load():
        for q in range(8):
            a(f"buffer_load_dwordx4 v{122 + ((q >> 1) & 1)}, s[44:47], s54 offen {prm.nt_wuk} lds", tag="wuk")
            a("s_add_u32 m0, m0, 1024\ns_add_u32 s54, s54, 32768")
    for t in range(2): wq_load(t)
    srd(a, 32, "x"); srd(a, 36, "ws")
    for u in range(4): a(f"buffer_load_dwordx4 {v(16+4*u,4)}, v4, s[32:35], s{56+u} offen", tag="x")
    epoch_load(a)
    for t in range(2, 8):
        wq_load(t)
        if t == prm.wuk_at: wuk_load()
    if prm.probe: srd(a, 48, "dbg")
    a(f"""
    v_and_b32 v10, 1, v3
    v_lshlrev_b32 v10, 18, v10
    v_lshrrev_b32 v11, 1, v3
    v_lshl_add_u32 v10, v11, 15, v10
    v_lshrrev_b32 v11, 3, v2
    v_lshl_add_u32 v10, v11, 14, v10
    v_and_b32 v11, 7, v2
    v_lshl_add_u32 v100, v11, 4, v10
    s_lshl_b32 s52, s3, 16
    s_lshl_b32 s53, s62, 7
    s_add_u32 s52, s52, s53
    s_add_u32 s52, s52, {WS_A}
    v_and_b32 v12, 1, v2
    v_cmp_eq_u32 vcc, 1, v12
    v_mov_b32 v7, 0x0c0c0100
    v_mov_b32 v8, 0x01000c0c
    v_cndmask_b32 v10, v7, v8, vcc
    v_mov_b32 v7, 0x0c0c0302
    v_mov_b32 v8, 0x03020c0c
    v_cndmask_b32 v11, v7, v8, vcc
    v_bfe_u32 v12, v2, 1, 2
    v_mov_b32 v7, 0x0c0c0c0c
    """)
    for p in range(4):
        a(f"v_cmp_eq_u32 vcc, {p}, v12\nv_cndmask_b32 v{32+2*p}, v7, v10, vcc\nv_cndmask_b32 v{33+2*p}, v7, v11, vcc")
    a(f"""
    v_lshrrev_b32 v7, 3, v2
    s_lshl_b32 s63, s3, 1
    v_add_u32 v7, s63, v7
    v_mul_u32_u24 v7, {XROW}, v7
    v_and_b32 v8, 7, v2
    v_lshl_add_u32 v7, v8, 1, v7
    v_lshl_add_u32 v7, v3, 6, v7
    v_add_u32 v7, {W_QX}, v7
    v_mul_u32_u24 v8, {XROW}, v8
    v_lshl_add_u32 v8, v3, 4, v8
    v_add_u32 v8, {W_QX}, v8
    v_lshlrev_b32 v10, 15, v2
    v_lshl_add_u32 v10, v3, 4, v10
    s_lshl_b32 s56, s62, 8
    s_lshl_b32 s57, s3, 6
    s_add_u32 s56, s56, s57
    s_mov_b32 s57, {f32(128 ** -0.5 * LOG2E)}
    s_mov_b32 s68, 0x00030003
    s_mov_b32 s69, 0x00030003
    v_mov_b32 v101, 0xfffefffe
    v_mov_b32 v102, 0xffffff00
    v_lshrrev_b32 v11, 2, v2
    v_lshlrev_b32 v11, 3, v11
    v_and_b32 v12, 3, v2
    v_add_u32 v11, v11, v12
    v_lshlrev_b32 v11, 8, v11
    v_and_b32 v12, 7, v2
    v_lshlrev_b32 v12, 1, v12
    v_xor_b32 v12, v12, v3
    v_lshl_add_u32 v11, v12, 4, v11
    v_add_u32 v92, s55, v11
    v_xor_b32 v93, 64, v92
    v_xor_b32 v94, 0x80, v92
    v_xor_b32 v95, 0xc0, v92
    """)
    for t in range(8, prm.run0):
        wq_load(t)
        if t == prm.wuk_at: wuk_load()
    a.vmwait("ep")
    stamp(a, 1, prm)
    epoch_calc(a)
    def p2_setup():
        a(f"""
        v_bfe_u32 v5, v1, 2, 3
        v_lshlrev_b32 v5, 17, v5
        v_lshrrev_b32 v6, 5, v1
        v_lshl_add_u32 v5, v6, 13, v5
        v_and_b32 v6, 3, v1
        v_lshl_add_u32 v5, v6, 4, v5
        s_mov_b32 s66, s55
        s_lshl_b32 s64, s3, 8
        v_bfe_u32 v4, v2, 2, 1
        v_lshlrev_b32 v12, 10, v4
        v_lshl_add_u32 v12, v3, 4, v12
        v_lshrrev_b32 v14, 1, v1
        v_lshlrev_b32 v124, 13, v14
        v_mul_u32_u24 v14, 3584, v14
        v_and_b32 v15, 1, v1
        v_lshl_add_u32 v14, v15, 4, v14
        v_lshl_add_u32 v124, v15, 7, v124
        v_and_b32 v15, 31, v1
        v_mul_u32_u24 v125, 3584, v15
        v_lshlrev_b32 v15, 7, v15
        v_lshlrev_b32 v126, 7, v1
        s_sub_u32 s54, s54, {8*32768}
        s_add_u32 s55, s53, {WS_H0}
        s_lshl_b32 s90, s60, 17
        s_add_u32 s90, s90, s64
        """.replace("s90", SWO))
    def wo_quarter(i):
        if i == 0: a.lg0()
        a(f"s_add_u32 s63, s61, {i}\ns_and_b32 s63, s63, 3\ns_lshl_b32 s63, s63, 15\ns_add_u32 s63, s63, {SWO}\ns_add_u32 m0, s66, {8192*i}" if prm.rot else f"s_add_u32 s63, {SWO}, {32768*i}\ns_add_u32 m0, s66, {8192*i}")
        for q in range(8):
            a(f"buffer_load_dwordx4 v{120 + ((q >> 1) & 1)}, s[44:47], s63 offen {prm.nt_wo} lds", tag=f"wo{i}")
            if q < 7: a("s_add_u32 m0, m0, 1024\ns_add_u32 s63, s63, 4096")
    def wo_frags(i):
        a.vmwait(f"wo{i}"); a.lg0()
        for p in range(8):
            for e in range(2):
                a(f"ds_read_b64_tr_b16 {ag(16*p+4*i+2*e,2)}, v{104+p} offset:{8192*i + 1024*e}", tag="wof")
            if p == 3: a.lgwait("wof")
    def p2_step(tk):
        if tk == "xg":
            srd(a, 40, "gate")
            for t in range(4): a(f"buffer_load_dwordx4 {ag(160+4*t,4)}, v12, s[32:35], s64 offen offset:{64*t}", tag="xf")
            a("buffer_load_dwordx4 a[176:179], v9, s[32:35], 0 offen\nbuffer_load_dwordx4 a[180:183], v9, s[32:35], 0 offen offset:1024\nbuffer_load_dwordx4 a[184:187], v9, s[40:43], 0 offen", tag="gt")
        elif tk == "ad":
            a(f"""
            v_lshrrev_b32 v13, 2, v2
            v_lshl_add_u32 v8, v3, 3, v13
            v_and_b32 v10, 3, v2
            v_lshlrev_b32 v11, 6, v8
            v_lshl_add_u32 v11, v10, 3, v11
            v_add_u32 v11, s66, v11
            v_lshlrev_b32 v6, 5, v8
            v_lshl_add_u32 v6, v10, 3, v6
            v_add_u32 v6, s66, v6
            v_and_b32 v16, 1, v3
            v_lshl_add_u32 v16, v16, 2, v13
            v_lshlrev_b32 v16, 1, v16
            v_lshrrev_b32 v17, 1, v10
            v_xor_b32 v16, v16, v17
            v_lshlrev_b32 v16, 4, v16
            v_and_b32 v17, 1, v10
            v_lshl_add_u32 v16, v17, 3, v16
            v_add_u32 v16, s66, v16
            v_lshl_add_u32 v104, v8, 8, v16
            v_lshl_add_u32 v13, v3, 2, v13
            v_lshl_add_u32 v112, v13, 8, v16
            s_lshl_b32 s58, s3, 10
            s_add_u32 s58, s58, {W_HX}
            v_add_u32 v7, s58, v9
            v_add_u32 v13, {W_HX}, v9
            """)
            for p in range(1, 8): a(f"v_xor_b32 v{104+p}, {32*p}, v104\nv_xor_b32 v{112+p}, {32*p}, v112")
            a(f"""
            v_lshlrev_b32 v72, 9, v1
            s_and_b32 s58, s3, 1
            s_lshl_b32 s58, s58, 7
            v_lshl_add_u32 v73, v3, 5, s58
            v_lshlrev_b32 v74, 4, v2
            v_lshl_add_u32 v74, v3, 11, v74
            s_mul_i32 s58, s3, {XROW}
            v_and_b32 v75, 7, v2
            v_lshlrev_b32 v75, 1, v75
            v_lshl_add_u32 v75, v3, 6, v75
            v_add_u32 v75, s58, v75
            v_add_u32 v75, {W_OX}, v75
            v_mul_u32_u24 v8, {XROW}, v10
            v_lshl_add_u32 v8, v3, 4, v8
            v_add_u32 v8, {W_OX}, v8
            v_bfe_u32 v10, v2, 1, 1
            v_mul_u32_u24 v10, {XROW}, v10
            v_lshl_add_u32 v10, v3, 3, v10
            s_lshl_b32 s58, s3, 6
            v_add_u32 v10, s58, v10
            v_add_u32 v10, {W_CX}, v10
            v_mul_u32_u24 v16, {XROW}, v4
            v_lshl_add_u32 v16, v3, 4, v16
            v_add_u32 v16, {W_CX}, v16
            """)
            for i in range(4):
                if prm.rot: a(f"s_add_u32 s58, s61, {i}\ns_and_b32 s58, s58, 3\ns_lshl_b32 s58, s58, 6\nv_add_u32 v{24+i}, s58, v16")
                else: a(f"v_add_u32 v{24+i}, {64*i}, v16")
        elif tk == "gc":
            a.vmwait("gt")
            for i in range(12): a(f"v_accvgpr_read_b32 v{40+i}, a{176+i}")
            for b in range(2):
                for i in range(4): a(f"v_dot2_f32_bf16 v{28+b}, v{40+4*b+i}, v{48+i}, {'0' if i == 0 else f'v{28+b}'}")
            allreduce(a, "v_add_f32", [28, 29], [30, 31])
            a(f"s_mov_b32 s59, {f32(-LOG2E)}")
            for b in range(2): rnd_bf16(a, 28 + b)
            for b in range(2): a(f"v_mul_f32 v{28+b}, s59, v{28+b}")
            for b in range(2): a(f"v_exp_f32 v{28+b}, v{28+b}")
            for b in range(2): a(f"v_add_f32 v{28+b}, 1.0, v{28+b}")
            for b in range(2): a(f"v_rcp_f32 v{28+b}, v{28+b}")
            for b in range(2): rnd_bf16(a, 28 + b)
            for b in range(2): a(f"v_sub_f32 v{30+b}, 1.0, v{28+b}")
            for b in range(2): rnd_bf16(a, 30 + b)
            a("""
            v_and_b32 v16, 1, v3
            v_cmp_eq_u32 vcc, 1, v16
            s_cmp_ge_u32 s3, 2
            s_cselect_b64 s[68:69], -1, 0
            v_cndmask_b32 v30, v30, v31, vcc
            v_cndmask_b32 v103, v28, v29, s[68:69]
            """)
        elif tk == "H":
            flag_poll(a, "L_w_h0", 16, "s55")
        elif tk == "T":
            stamp(a, 10, prm)
        elif tk[0] == "t":
            stamp2(a, int(tk[1:]), prm)
        elif tk == "pw":
            a("s_lshl_b32 s63, s60, 17\ns_lshl_b32 s58, s61, 15\ns_add_u32 s63, s63, s58\ns_lshl_b32 s58, s3, 13\ns_add_u32 s63, s63, s58")
            a("buffer_load_dword v127, v126, s[44:47], s63 offen", tag="pf")
        elif tk == "pu":
            srd(a, 40, "wuv")
            a("buffer_load_dword v127, v124, s[40:43], s54 offen", tag="pf")
        elif tk == "pf":
            a("s_cmp_ge_u32 s62, 112\ns_cbranch_scc1 L_w_noffn0")
            srd(a, 40, "w1")
            a(f"s_lshl_b32 s63, s61, 2\ns_add_u32 s63, s63, s3\ns_mul_i32 s63, s63, {32*3584}\ns_lshl_b32 s58, s60, 7\ns_add_u32 s63, s63, s58")
            a("buffer_load_dword v127, v125, s[40:43], s63 offen", count=False)
            srd(a, 40, "w2")
            a("s_lshl_b32 s63, s62, 14\ns_lshl_b32 s58, s3, 12\ns_add_u32 s63, s63, s58")
            a("buffer_load_dword v127, v15, s[40:43], s63 offen", count=False)
            a("L_w_noffn0:")
        elif tk[0] == "o":
            wo_quarter(int(tk[1]))
        elif tk[0] == "f" and len(tk) == 2:
            wo_frags(int(tk[1]))
        elif tk == "ffn":
            a("s_cmp_ge_u32 s62, 112\ns_cbranch_scc1 L_w_noffn1")
            srd(a, 40, "w1")
            a(f"s_lshl_b32 s63, s62, 5\ns_mul_i32 s58, s3, {4*32*3584}\ns_add_u32 s63, s63, s58\ns_add_u32 m0, s66, 24576")
            for q in range(4):
                a(f"buffer_load_dwordx4 v14, s[40:43], s63 offen {prm.nt_ffn} lds", count=False)
                a(f"s_add_u32 m0, m0, 1024\ns_add_u32 s63, s63, {32*3584}")
            srd(a, 40, "w2")
            a("s_lshl_b32 s63, s62, 14\ns_add_u32 s63, s63, s64")
            for q in range(4):
                a(f"buffer_load_dwordx4 v{120 + (q & 1)}, s[40:43], s63 offen {prm.nt_ffn} lds", count=False)
                a("s_add_u32 m0, m0, 1024\ns_add_u32 s63, s63, 4096")
            a("L_w_noffn1:")
            a.vm.append(("mark", "ffn_end"))
        elif tk == "uv":
            srd(a, 40, "wuv")
            a("s_lshl_b32 s63, s61, 20\ns_lshl_b32 s58, s3, 6\ns_add_u32 s63, s63, s58\ns_add_u32 s63, s63, s65\ns_add_u32 m0, s66, 16384")
            for q in range(8):
                a(f"buffer_load_dwordx4 v5, s[40:43], s63 offen {prm.nt_wuv} lds", tag="wuv")
                a("s_add_u32 m0, m0, 1024\ns_add_u32 s63, s63, 16384")
        elif tk == "f1c":
            a.vmwait("ffn_end"); a.lg0()
            for t in range(4):
                for e in range(2): a(f"ds_read_b64_tr_b16 {v(144+4*t+2*e,2)}, v6 offset:{24576 + 1024*t + 128*e}", tag="w1f")
            a.lgwait("w1f")
            for p in range(8): a(f"ds_read_b64_tr_b16 {v(56+2*p,2)}, v{112+p} offset:28672", tag="w2f")
            for t in range(4): a(f"{MF} v[40:43], {v(144+4*t,4)}, {ag(160+4*t,4)}, {'0' if t == 0 else 'v[40:43]'}")
            a.lg0()
        elif tk == "hw":
            a("ds_write_b128 v7, v[40:43]")
        elif tk == "uf":
            a.vmwait("wuv"); a.lg0()
            for T in range(2):
                for t in range(4):
                    for e in range(2):
                        a(f"ds_read_b64_tr_b16 {ag(128+16*T+4*t+2*e,2)}, v11 offset:{16384 + 2048*t + 256*e + 32*T}", tag="uvf")
                    if T == 1 and t == 1: a.lgwait("uvf")
            a.lg0()
        elif tk == "f2c":
            a("s_waitcnt lgkmcnt(0)\ns_barrier")
            a("s_cmp_ge_u32 s62, 112\ns_cbranch_scc1 L_w_noffn2")
            for w in range(4): a(f"ds_read_b128 {v(40+4*w,4)}, v13 offset:{1024*w}", tag="hx")
            a.lg0()
            for i in range(4): a(f"v_add_f32 v{40+i}, v{40+i}, v{44+i}\nv_add_f32 v{48+i}, v{48+i}, v{52+i}")
            for i in range(4): a(f"v_add_f32 v{16+i}, v{40+i}, v{48+i}")
            a("v_cvt_pk_bf16_f32 v20, v16, v17\nv_cvt_pk_bf16_f32 v21, v18, v19")
            a("v_lshlrev_b32 v16, 16, v20\nv_and_b32 v17, 0xffff0000, v20\nv_lshlrev_b32 v18, 16, v21\nv_and_b32 v19, 0xffff0000, v21")
            for i in range(4): a(f"v_mul_f32 v{20+i}, s59, v{16+i}")
            for i in range(4): a(f"v_exp_f32 v{20+i}, v{20+i}")
            for i in range(4): a(f"v_add_f32 v{20+i}, 1.0, v{20+i}")
            for i in range(4): a(f"v_rcp_f32 v{20+i}, v{20+i}")
            for i in range(4): a(f"v_mul_f32 v{16+i}, v{16+i}, v{20+i}")
            a("v_cvt_pk_bf16_f32 v20, v16, v17\nv_cvt_pk_bf16_f32 v21, v18, v19")
            for p in range(8): a(f"v_mfma_f32_16x16x16_bf16 {v(192+4*p,4)}, v[20:21], {v(56+2*p,2)}, 0")
            for p in range(8): a(f"v_mul_f32 v{192+4*p}, v30, v{192+4*p}")
            a("s_branch L_w_ffnd\nL_w_noffn2:")
            for p in range(8): a(f"v_mov_b32 v{192+4*p}, 0")
            a("L_w_ffnd:")
        elif tk == "fin":
            a(f"""
            s_lshr_b32 s63, s3, 1
            s_lshl_b32 s63, s63, 15
            s_lshl_b32 s64, s60, 4
            s_add_u32 s63, s63, s64
            s_add_u32 s63, s63, {WS_S}
            s_mul_i32 s64, s62, {PSTR}
            s_lshl_b32 s66, s3, 13
            s_add_u32 s64, s64, s66
            s_add_u32 s64, s64, {WS_P}
            s_add_u32 s54, s53, {WS_H1}
            s_add_u32 s53, s53, {WS_H2}
            v_mov_b32 v15, {EP}
            v_cmp_lt_u32 s[58:59], 1, v3
            s_waitcnt lgkmcnt(0)
            """)
        else:
            raise ValueError(tk)
    nperm = 0; nm = 0
    def perms(upto):
        nonlocal nperm
        while nperm < min(upto, 128):
            t, p = nperm // 4, nperm % 4
            a(f"v_perm_b32 v{128+4*t+p}, v{16+(t>>1)}, v{16+(t>>1)}, v{32+2*p+(t&1)}"); nperm += 1
    def mf():
        nonlocal nm
        t = nm
        perms(4 * t + 4)
        a.vmwait(f"wq{t}")
        a(f"{MF} v[72:75], {ag(4*t,4)}, {v(128+4*t,4)}, {'0' if t == 0 else 'v[72:75]'}"); nm += 1
    ukdone = False
    def wuk_frags():
        nonlocal ukdone
        a.vmwait("wuk")
        for T in range(2):
            for t in range(4): a(f"ds_read_b128 {v(40+16*T+4*t,4)}, v{92+t} offset:{1024*T}", tag="ukf")
        ukdone = True
    for t in range(prm.run0, 32):
        wq_load(t)
        if t == prm.wuk_at: wuk_load()
        if t == max(prm.wuk_at + prm.lag, prm.run0) and t < 31: wuk_frags()
        perms(nperm + 6)
        while nm <= t - prm.lag and nm < (t - prm.run0 + 1) * 2: mf()
    srd(a, 44, "wo")
    p2_setup()
    toks = prm.wpat.split(".")
    iq = toks.index("Q")
    for tk in toks[:iq]: p2_step(tk)
    while nm < 32: mf()
    if not ukdone: wuk_frags()
    stamp(a, 2, prm)
    a("v_cvt_pk_bf16_f32 v76, v72, v73\nv_cvt_pk_bf16_f32 v77, v74, v75")
    a("ds_write_b16 v7, v76\nds_write_b16_d16_hi v7, v76 offset:16\nds_write_b16 v7, v77 offset:32\nds_write_b16_d16_hi v7, v77 offset:48")
    a("s_waitcnt lgkmcnt(0)\ns_barrier")
    for t in range(4): a(f"ds_read_b128 {v(84+4*t,4)}, v8 offset:{64*t}", tag=f"qb{t}")
    for t in range(4):
        a.lgwait(f"qb{t}")
        for T in range(2):
            a(f"{MF} {v(76+4*T,4)}, {v(40+16*T+4*t,4)}, {v(84+4*t,4)}, {'0' if t == 0 else v(76+4*T,4)}")
    for i in range(8): a(f"v_add_f32_dpp v{76+i}, v{76+i}, v{76+i} quad_perm:[2,3,0,1] {DPPM}")
    for i in range(8): a(f"v_add_f32_dpp v{76+i}, v{76+i}, v{76+i} row_ror:4 {DPPM}")
    for i in range(8): a(f"v_mul_f32 v{76+i}, s57, v{76+i}")
    for i in range(4): a(f"v_cvt_pk_bf16_f32 v{84+i}, v{76+2*i}, v{77+2*i}")
    for i in range(4): a(f"v_and_or_b32 v{84+i}, v{84+i}, v101, {TQ[i]}")
    a("s_mov_b64 exec, s[68:69]")
    a("buffer_store_dwordx4 v[84:87], v10, s[36:39], s56 offen sc1", tag="qst")
    a("s_mov_b64 exec, -1")
    stamp(a, 3, prm)
    for tk in toks[iq + 1:]: p2_step(tk)
    stamp(a, 4, prm)
    flag_poll(a, "L_w_h1", 16, "s54")
    stamp(a, 5, prm)
    a("s_mov_b32 s67, 0\nL_w_spoll:")
    a("buffer_load_dwordx4 v[16:19], v72, s[36:39], s63 offen sc1")
    a(f"""
    s_add_u32 s67, s67, 1
    s_waitcnt vmcnt(0)
    v_cmp_ne_u32 vcc, {EP}, v18
    s_cmp_ge_u32 s67, {SPIN}
    s_cbranch_scc1 L_w_sdone
    s_cbranch_vccnz L_w_spoll
    L_w_sdone:
    """)
    if prm.stamps: a("s_mov_b32 s92, s67")
    stamp(a, 6, prm)
    def bulk():
        for u in range(8): a(f"buffer_load_dwordx4 {v(160+4*u,4)}, v74, s[36:39], s64 offen offset:{256*u} sc1", tag=f"bk{u}")
    bulk()
    a("v_mov_b32 v20, v16")
    allreduce(a, "v_max_f32", [20], [21])
    a("v_sub_f32 v20, v16, v20\nv_exp_f32 v20, v20\nv_cvt_pk_bf16_f32 v28, v20, v20")
    for u in range(8): a(f"ds_bpermute_b32 v{40+u}, v73, v28 offset:{4*u}", tag=f"bp{u}")
    a("v_lshlrev_b32 v20, 16, v28\nv_mul_f32 v20, v20, v17")
    allreduce(a, "v_add_f32", [20], [21])
    a("v_rcp_f32 v20, v20")
    for u in range(8):
        a.lgwait(f"bp{u}")
        for p in range(4): a(f"v_perm_b32 v{128+4*u+p}, v{40+u}, v{40+u}, v{32+2*p}")
    a("s_mov_b32 s67, 0\nL_w_bpoll:\ns_add_u32 s67, s67, 1")
    for u in range(8):
        a.vmwait(f"bk{u}")
        a(f"{MF} v[48:51], {v(160+4*u,4)}, {v(128+4*u,4)}, {'0' if u == 0 else 'v[48:51]'}")
        tagchk(a, 21, 160 + 4 * u, u == 0)
    a(f"""
    v_and_b32 v21, 0x10001, v21
    v_cmp_ne_u32 vcc, 0, v21
    s_cbranch_vccz L_w_bdone
    s_cmp_ge_u32 s67, {SPIN}
    s_cbranch_scc1 L_w_bdone
    """)
    bulk()
    a("s_branch L_w_bpoll\nL_w_bdone:")
    stamp(a, 7, prm)
    if prm.stamps: a("s_mov_b32 s94, s67")
    def hint2(k):
        if prm.h2_at == k:
            a("s_cmp_lg_u32 s3, 3\ns_cbranch_scc1 L_w_noh2\ns_mov_b64 exec, 1")
            a("buffer_store_dword v15, off, s[36:39], s53 sc1", count=False)
            a("s_mov_b64 exec, -1\nL_w_noh2:")
    for i in range(4): a(f"v_mul_f32 v{48+i}, v20, v{48+i}")
    a("v_cvt_pk_bf16_f32 v52, v48, v49\nv_cvt_pk_bf16_f32 v53, v50, v51")
    a("ds_write_b16 v75, v52\nds_write_b16_d16_hi v75, v52 offset:16\nds_write_b16 v75, v53 offset:32\nds_write_b16_d16_hi v75, v53 offset:48")
    hint2(0)
    a("s_waitcnt lgkmcnt(0)\ns_barrier")
    for t in range(4): a(f"ds_read_b128 {v(84+4*t,4)}, v8 offset:{64*t}", tag=f"ob{t}")
    hint2(1)
    for t in range(4):
        a.lgwait(f"ob{t}")
        for T in range(2):
            a(f"{MF} {v(76+4*T,4)}, {ag(128+16*T+4*t,4)}, {v(84+4*t,4)}, {'0' if t == 0 else v(76+4*T,4)}")
    for i in range(8): a(f"v_add_f32_dpp v{76+i}, v{76+i}, v{76+i} quad_perm:[1,0,3,2] {DPPM}")
    for i in range(4): a(f"v_cvt_pk_bf16_f32 v{52+i}, v{76+2*i}, v{77+2*i}")
    a("ds_write_b64 v10, v[52:53]\nds_write_b64 v10, v[54:55] offset:32")
    a("s_waitcnt lgkmcnt(0)\ns_barrier")
    for i in range(4): a(f"ds_read_b128 {v(84+4*i,4)}, v{24+i}", tag=f"cb{i}")
    hint2(2)
    for i in range(4):
        a.lgwait(f"cb{i}")
        for p in range(8):
            a(f"{MF} {v(192+4*p,4)}, {v(84+4*i,4)}, {ag(16*p+4*i,4)}, {'0' if i == 0 else v(192+4*p,4)}")
    hint2(3)
    for q in range(4): a(f"v_cndmask_b32 v{52+q}, v{192+4*q}, v{208+4*q}, s[58:59]")
    for q in range(4): a(f"v_and_or_b32 v{52+q}, v{52+q}, v102, {TN}")
    a("buffer_store_dwordx4 v[52:55], v100, s[36:39], s52 offen sc1")
    stamp(a, 8, prm)
    if prm.stamps:
        a("s_waitcnt vmcnt(0)"); stamp(a, 9, prm)
    stamp_out(a, prm, 13)
    a("s_endpgm")

def gen_att(a, prm):
    a.role = "A"
    a.vm = []; a.lg = []
    a(f"""
    s_sub_u32 s61, s31, 16
    s_lshl_b32 s60, s61, 3
    s_add_u32 s60, s60, s30
    v_lshlrev_b32 v9, 4, v1
    v_lshlrev_b32 v124, 7, v1
    s_lshl_b32 s62, s60, 17
    s_lshl_b32 s63, s3, 15
    s_add_u32 s62, s62, s63
    s_mov_b32 s61, s62
    s_mul_i32 s63, s3, {16*ROW}
    s_mov_b32 m0, s63
    s_waitcnt lgkmcnt(0)
    """)
    srd(a, 40, "ckv")
    nrow = 0
    def setup1():
        srd(a, 36, "ws")
        epoch_load(a)
        if prm.probe: srd(a, 48, "dbg")
        srd(a, 32, "x")
        a(f"s_mov_b32 s59, m0\ns_and_b32 s58, s3, 1\ns_lshl_b32 s58, s58, 10\ns_add_u32 m0, s58, {A_X}")
        a("buffer_load_dwordx4 v9, s[32:35], s58 offen lds", tag="xl")
        a("s_mov_b32 m0, s59")
        a(f"""
        s_mov_b32 s57, {16*PSTR}
        v_mul_lo_u32 v46, s57, v3
        v_lshl_add_u32 v46, v2, 4, v46
        s_mul_i32 s58, s3, {PSTR}
        s_lshl_b32 s59, s60, 8
        s_add_u32 s58, s58, s59
        s_add_u32 s58, s58, {WS_P}
        s_lshl_b32 s57, s60, 9
        s_add_u32 s57, s57, {WS_S}
        s_lshl_b32 s56, s60, 7
        s_add_u32 s55, s56, {WS_H0}
        s_add_u32 s56, s56, {WS_H1}
        v_mul_u32_u24 v5, {ROW}, v2
        v_lshl_add_u32 v5, v3, 4, v5
        v_add_u32 v47, {A_Q}, v5
        v_add_u32 v5, s63, v5
        v_add_u32 v6, {A_ST2}, v5
        v_lshrrev_b32 v7, 2, v2
        v_lshl_add_u32 v7, v3, 2, v7
        v_mul_u32_u24 v7, {ROW}, v7
        v_and_b32 v8, 3, v2
        v_lshl_add_u32 v7, v8, 3, v7
        s_lshl_b32 s64, s3, 8
        v_add_u32 v7, s64, v7
        v_add_u32 v8, {A_ST2}, v7
        """)
    epdone = False
    def need_epoch():
        nonlocal epdone
        if not epdone:
            a.vmwait("ep"); epoch_calc(a); a(f"v_mov_b32 v39, {EP}"); epdone = True
    def hint(lab, sreg):
        a(f"s_cmp_lg_u32 s3, 3\ns_cbranch_scc1 {lab}\ns_mov_b64 exec, 1")
        a(f"buffer_store_dword v39, off, s[36:39], {sreg} sc1", count=False)
        a(f"s_mov_b64 exec, -1\n{lab}:")
    def row_dma():
        nonlocal nrow
        if nrow == 16: a(f"s_add_u32 m0, s63, {A_ST2}\ns_nop 0")
        a(f"buffer_load_dwordx4 v9, s[40:43], s62 offen {prm.nt_ckv} lds", tag=f"row{nrow}")
        a(f"s_add_u32 m0, m0, {ROW}\ns_add_u32 s62, s62, 1024")
        nrow += 1
        if nrow == 4: setup1()
        if nrow == prm.h0_at: need_epoch(); hint("L_a_noh0", "s55")
    done = set()
    def step_k():
        a.vmwait("row15")
        stamp(a, 2, prm)
        for t in range(16):
            a(f"ds_read_b128 {ag(4*t,4)}, v5 offset:{64*t}", tag="k0")
            if t == 7: a.lgwait("k0")
        done.add("k")
    def step_a():
        a("s_barrier")
        n = 0
        for pq in range(8):
            for u in range(4):
                a(f"ds_read_b64_tr_b16 {ag(128+16*pq+4*u,2)}, v7 offset:{16*u*ROW + 32*pq}", tag="v0")
                n += 1
                if n % 8 == 0 and n < 32: a.lgwait("v0")
        done.add("a")
    def step_s():
        need_epoch()
        a(f"""
        s_lshr_b32 s64, s60, 6
        s_lshl_b32 s64, s64, 15
        s_lshl_b32 s65, s3, 13
        s_add_u32 s64, s64, s65
        s_add_u32 s65, s64, 4096
        s_mul_i32 s66, s3, {8*QROW}
        v_add_u32 v11, s66, v9
        v_and_b32 v12, 31, v1
        v_lshlrev_b32 v12, 4, v12
        s_lshl_b32 s52, s3, 2
        s_add_u32 s52, s52, {A_MX}
        v_add_u32 v12, s52, v12
        v_lshlrev_b32 v10, 4, v2
        v_add_u32 v13, {A_MX}, v10
        s_lshl_b32 s52, s3, 11
        s_add_u32 s52, s52, {A_PB}
        v_add_u32 v14, s52, v9
        v_add_u32 v15, {A_PB}, v9
        s_and_b32 s52, s3, 1
        s_lshl_b32 s53, s52, 10
        v_add_u32 v45, s53, v15
        s_lshl_b32 s53, s52, 8
        s_add_u32 s57, s57, s53
        s_cmp_eq_u32 s52, 1
        s_cselect_b64 s[68:69], -1, 0
        v_mov_b32 v40, 0x3f803f80
        v_mov_b32 v41, 0x3f803f80
        v_mov_b32 v42, 0x3f803f80
        v_mov_b32 v43, 0x3f803f80
        v_mov_b32 v58, {EP}
        v_mov_b32 v59, {EP}
        v_mov_b32 v4, 0xfffefffe
        s_lshr_b32 s52, s60, 5
        s_lshl_b32 s52, s52, 3
        s_add_u32 s52, s52, s30
        s_bfe_u32 s53, s60, 0x20003
        s_lshl_b32 s54, s52, 2
        s_add_u32 s54, s54, s53
        s_lshl_b32 s53, s54, 5
        s_mul_i32 s52, s3, {4*32*3584}
        s_add_u32 s53, s53, s52
        s_lshl_b32 s52, s54, 14
        s_lshl_b32 s30, s3, 8
        s_add_u32 s52, s52, s30
        s_lshl_b32 s30, s3, 13
        s_add_u32 s30, s30, {A_F}
        v_lshrrev_b32 v60, 1, v1
        v_mul_u32_u24 v60, 3584, v60
        v_and_b32 v61, 1, v1
        v_lshl_add_u32 v60, v61, 4, v60
        v_lshlrev_b32 v61, 1, v3
        v_xor_b32 v61, v61, v2
        v_xor_b32 v62, 8, v61
        v_lshlrev_b32 v61, 4, v61
        v_lshlrev_b32 v62, 4, v62
        v_lshl_add_u32 v61, v3, 10, v61
        v_lshl_add_u32 v62, v3, 10, v62
        """)
        done.add("s")
    def step_b():
        a("s_waitcnt lgkmcnt(0)\ns_barrier")
        done.add("b")
    steps = dict(k=step_k, a=step_a, s=step_s, b=step_b)
    for tok in prm.apat.split("."):
        if tok in steps:
            steps[tok](); continue
        k = int(tok[1:])
        if tok[0] == "r":
            for i in range(k): row_dma()
        elif tok[0] == "p":
            a(f"s_add_u32 s59, s61, {8192*k}")
            a(f"buffer_load_dword v127, v124, s[40:43], s59 offen", tag="pf")
        elif tok[0] == "w":
            a.vmwait(f"row{k}")
    assert nrow == 32
    stamp(a, 1, prm)
    for t_ in "kasb":
        if t_ not in done: steps[t_]()
    def pstore(data, hg, r, tag):
        a(f"s_add_u32 s59, s58, {(16*hg + r) * 4 * PSTR}")
        a(f"buffer_store_dwordx4 {data}, v46, s[36:39], s59 offen sc1", tag=tag)
    if prm.qw < 16: a.vmwait(f"row{31-prm.qw}")
    stamp(a, 3, prm)
    def q_dma(flags):
        a("s_mov_b32 m0, s66\ns_nop 0")
        for i in range(8):
            a(f"buffer_load_dwordx4 v9, s[36:39], s{64 + i//4} offen offset:{(i%4)*1024} {flags} lds", tag="q")
            if i < 7: a(f"s_add_u32 m0, m0, {QROW - 1024 if i != 3 else QROW + 3072}\ns_nop 0")
    q_dma(prm.q_first)
    srd(a, 40, "w1"); srd(a, 44, "w2")
    a(f"""
    s_and_b32 s61, s54, 3
    s_lshl_b32 s61, s61, 2
    s_add_u32 s61, s61, s3
    s_mul_i32 s61, s61, {32*3584}
    s_lshr_b32 s62, s54, 2
    s_lshl_b32 s62, s62, 7
    s_add_u32 s61, s61, s62
    s_lshl_b32 s62, s54, 14
    s_lshl_b32 s59, s3, 12
    s_add_u32 s62, s62, s59
    v_and_b32 v37, 31, v1
    v_mul_u32_u24 v36, 3584, v37
    v_lshlrev_b32 v37, 7, v37
    """)
    a.vmwait("row31")
    stamp(a, 4, prm)
    for t in range(16):
        a(f"ds_read_b128 {ag(64+4*t,4)}, v6 offset:{64*t}", tag="k1")
        if t == 7: a.lgwait("k1")
    a("s_mov_b32 s67, 0")
    a("L_a_qchk:")
    a.vm0()
    for i in range(8): a(f"ds_read_b128 {v(128+4*i,4)}, v11 offset:{QROW*i}", tag=f"qo{i}")
    a("s_add_u32 s67, s67, 1")
    for i in range(8):
        a.lgwait(f"qo{i}")
        tagchk(a, 16, 128 + 4 * i, i == 0)
    a(f"""
    v_and_b32 v16, 0x10001, v16
    v_cmp_ne_u32 vcc, 0, v16
    s_cbranch_vccz L_a_qok
    s_cmp_ge_u32 s67, {SPIN}
    s_cbranch_scc1 L_a_qok
    """)
    q_dma("sc1")
    a("s_branch L_a_qchk\nL_a_qok:")
    if prm.stamps: a("s_mov_b32 s98, s67")
    nfd = 0
    def fdma(cnt=1):
        nonlocal nfd
        if nfd >= 8: return
        a(f"s_cmp_ge_u32 s54, 112\ns_cbranch_scc1 L_a_nofd{nfd}")
        lab = f"L_a_nofd{nfd}:"
        for _ in range(cnt):
            a(f"s_add_u32 m0, s30, {1024*nfd}")
            if nfd < 4:
                a(f"s_add_u32 s59, s53, {32*3584*nfd}")
                a(f"buffer_load_dwordx4 v60, s[40:43], s59 offen {prm.nt_ffn} lds", count=False)
            else:
                a(f"s_add_u32 s59, s52, {4096*(nfd-4)}")
                a(f"buffer_load_dwordx4 v{61 + (nfd & 1)}, s[44:47], s59 offen {prm.nt_ffn} lds", count=False)
            nfd += 1
        a(lab)
        if nfd == 8: a.vm.append(("mark", "fd_end"))
    if prm.fdma == "b": fdma(8)
    a("s_barrier")
    stamp(a, 5, prm)
    a.lg = []
    def hint1(k):
        if prm.h1_at == k: hint("L_a_noh1", "s56")
    def qrd(t):
        for hg in range(2): a(f"ds_read_b128 {v(128+8*t+4*hg,4)}, v47 offset:{16*hg*QROW + 64*t}", tag=f"q{t}_{hg}")
    def vrd(k):
        pq, u = k // 4, k % 4
        a(f"ds_read_b64_tr_b16 {ag(128+16*pq+4*u+2,2)}, v8 offset:{16*u*ROW + 32*pq}", tag="v1")
    AH = prm.ah
    for t in range(AH): qrd(t)
    nv = 0
    for t in range(16):
        for hg in range(2):
            a.lgwait(f"q{t}_{hg}")
            for kt in range(2):
                acc = 16 + 8 * kt + 4 * hg
                a(f"{MF} {v(acc,4)}, {ag(64*kt+4*t,4)}, {v(128+8*t+4*hg,4)}, {'0' if t == 0 else v(acc,4)}")
                if t + AH < 16:
                    if kt == 0: a(f"ds_read_b128 {v(128+8*(t+AH)+4*hg,4)}, v47 offset:{16*hg*QROW + 64*(t+AH)}", tag=f"q{t+AH}_{hg}")
                    elif t >= AH: vrd(nv); nv += 1
                elif nv < 32:
                    vrd(nv); nv += 1
        hint1(t)
        if prm.fdma[0] == "q" and t % int(prm.fdma[1:]) == 0: fdma()
        if prm.fdma == "p" and t == prm.fpf_at:
            a("s_cmp_ge_u32 s54, 112\ns_cbranch_scc1 L_a_nofpf")
            a("buffer_load_dword v63, v36, s[40:43], s61 offen", count=False)
            a("buffer_load_dword v63, v37, s[44:47], s62 offen", count=False)
            a("L_a_nofpf:")
    while nv < 32: vrd(nv); nv += 1
    stamp(a, 6, prm)
    hint1(16)
    S = lambda kt, hg, r: 16 + 8 * kt + 4 * hg + r
    for hg in range(2): a(f"v_max3_f32 v{32+hg}, v{S(0,hg,0)}, v{S(0,hg,1)}, v{S(0,hg,2)}")
    for hg in range(2): a(f"v_max3_f32 v{32+hg}, v{32+hg}, v{S(0,hg,3)}, v{S(1,hg,0)}")
    for hg in range(2): a(f"v_max3_f32 v{32+hg}, v{32+hg}, v{S(1,hg,1)}, v{S(1,hg,2)}")
    for hg in range(2): a(f"v_max_f32 v{32+hg}, v{32+hg}, v{S(1,hg,3)}")
    a("""
    v_permlane16_swap_b32 v32, v33
    v_max_f32 v32, v32, v33
    v_mov_b32 v33, v32
    v_permlane32_swap_b32 v32, v33
    v_max_f32 v32, v32, v33
    ds_write_b32 v12, v32
    """)
    if prm.fdma == "s": fdma(2)
    a("""
    s_waitcnt lgkmcnt(0)
    s_barrier
    ds_read_b128 v[32:35], v13
    ds_read_b128 v[48:51], v13 offset:256
    """)
    if prm.fdma == "s": fdma(2)
    hint1(17)
    a("""
    s_waitcnt lgkmcnt(1)
    v_max3_f32 v32, v32, v33, v34
    v_max_f32 v32, v32, v35
    """)
    for kt in range(2):
        for r in range(4): a(f"v_sub_f32 v{S(kt,0,r)}, v{S(kt,0,r)}, v32")
    a("s_waitcnt lgkmcnt(0)\nv_max3_f32 v33, v48, v49, v50\nv_max_f32 v33, v33, v51")
    for hg in range(2):
        if hg == 1:
            for kt in range(2):
                for r in range(4): a(f"v_sub_f32 v{S(kt,hg,r)}, v{S(kt,hg,r)}, v33")
        for kt in range(2):
            for r in range(4): a(f"v_exp_f32 v{S(kt,hg,r)}, v{S(kt,hg,r)}")
        for kt in range(2):
            for r2 in range(2): a(f"v_cvt_pk_bf16_f32 v{48+4*hg+2*kt+r2}, v{S(kt,hg,2*r2)}, v{S(kt,hg,2*r2+1)}")
        a(f"ds_write_b128 v14, {v(48+4*hg,4)} offset:{1024*hg}")
    a("v_cndmask_b32 v56, v32, v33, s[68:69]")
    if prm.fdma == "s": fdma(2)
    a("s_waitcnt lgkmcnt(0)\ns_barrier")
    a.lg = []
    for hg in range(2):
        for u in range(4): a(f"ds_read_b128 {v(128+8*u+4*hg,4)}, v15 offset:{(2*u+hg)*1024}", tag=f"p{u}_{hg}")
        if hg == 0:
            for u in range(4): a(f"ds_read_b128 {v(160+4*u,4)}, v45 offset:{2048*u}", tag=f"pl{u}")
    hint1(18)
    while nfd < 8 and prm.fdma != 'p': fdma(2)
    stamp(a, 7, prm)
    O = lambda pq, hg: 64 + 8 * pq + 4 * hg
    def cvt(hg, r, q):
        d = 176 + 16 * hg + 4 * r + q
        a(f"v_cvt_pk_bf16_f32 v{d}, v{O(2*q,hg)+r}, v{O(2*q+1,hg)+r}")
    def tg(hg, r, q):
        d = 176 + 16 * hg + 4 * r + q
        a(f"v_and_or_b32 v{d}, v{d}, v4, {TQ[q]}")
    for hg in range(2):
        for u in range(4):
            a.lgwait(f"p{u}_{hg}")
            for pq in range(8):
                a(f"{MF} {v(O(pq,hg),4)}, {v(128+8*u+4*hg,4)}, {ag(128+16*pq+4*u,4)}, {'0' if u == 0 else v(O(pq,hg),4)}")
                if hg == 1:
                    j = 8 * u + pq - 3
                    if 0 <= j < 24:
                        r, st = j // 6, j % 6
                        if st < 2: cvt(0, r, 2 * st); cvt(0, r, 2 * st + 1)
                        elif st < 4: tg(0, r, 2 * st - 4); tg(0, r, 2 * st - 3)
                        elif st == 4: pstore(v(176 + 4 * r, 4), 0, r, "pst")
            if hg == 0 and u == 0:
                for uu in range(4):
                    a.lgwait(f"pl{uu}")
                    a(f"{MF} v[32:35], v[40:43], {v(160+4*uu,4)}, {'0' if uu == 0 else 'v[32:35]'}")
            if hg == 0 and u == 1:
                a("v_mov_b32 v57, v32\ns_cmp_ge_u32 s3, 2\ns_cbranch_scc1 L_a_nost\ns_mov_b64 exec, 0xffff")
                a("buffer_store_dwordx4 v[56:59], v10, s[36:39], s57 offen sc1", count=False)
                a("s_mov_b64 exec, -1\nL_a_nost:")
            hint1(20 + 4 * hg + u)
    for r in range(4):
        for q in range(4): cvt(1, r, q)
        for q in range(4): tg(1, r, q)
        pstore(v(192 + 4 * r, 4), 1, r, "pst")
    stamp(a, 8, prm)
    if prm.fdma == "p": fdma(8)
    a("s_cmp_ge_u32 s54, 112\ns_cbranch_scc1 L_a_noffn")
    a(f"""
    s_mov_b32 s66, s30
    s_lshl_b32 s64, s3, 8
    s_add_u32 s64, s64, {A_X}
    v_bfe_u32 v12, v2, 2, 1
    v_lshlrev_b32 v12, 10, v12
    v_lshl_add_u32 v12, v3, 4, v12
    v_add_u32 v12, s64, v12
    """)
    a.lg = []
    for t in range(4): a(f"ds_read_b128 {v(128+4*t,4)}, v12 offset:{64*t}", tag="xf")
    a(f"""
    v_lshrrev_b32 v13, 2, v2
    v_lshl_add_u32 v8, v3, 3, v13
    v_and_b32 v10, 3, v2
    v_lshlrev_b32 v6, 5, v8
    v_lshl_add_u32 v6, v10, 3, v6
    v_add_u32 v6, s66, v6
    v_and_b32 v16, 1, v3
    v_lshl_add_u32 v16, v16, 2, v13
    v_lshlrev_b32 v16, 1, v16
    v_lshrrev_b32 v17, 1, v10
    v_xor_b32 v16, v16, v17
    v_lshlrev_b32 v16, 4, v16
    v_and_b32 v17, 1, v10
    v_lshl_add_u32 v16, v17, 3, v16
    v_add_u32 v16, s66, v16
    v_lshl_add_u32 v13, v3, 2, v13
    v_lshl_add_u32 v112, v13, 8, v16
    s_lshl_b32 s58, s3, 10
    v_add_u32 v7, s58, v9
    v_and_b32 v10, 1, v3
    v_lshlrev_b32 v10, 18, v10
    v_lshrrev_b32 v11, 1, v3
    v_lshl_add_u32 v10, v11, 15, v10
    v_lshrrev_b32 v11, 3, v2
    v_lshl_add_u32 v10, v11, 14, v10
    v_and_b32 v11, 7, v2
    v_lshl_add_u32 v10, v11, 4, v10
    s_lshl_b32 s62, s3, 16
    s_lshl_b32 s58, s54, 7
    s_add_u32 s62, s62, s58
    s_add_u32 s62, s62, {WS_F}
    v_mov_b32 v11, 0xffffff00
    s_mov_b32 s59, {f32(-LOG2E)}
    v_cmp_lt_u32 s[68:69], 1, v3
    """)
    for p in range(1, 8): a(f"v_xor_b32 v{112+p}, {32*p}, v112")
    a.vmwait("fd_end")
    for t in range(4):
        for e in range(2): a(f"ds_read_b64_tr_b16 {v(144+4*t+2*e,2)}, v6 offset:{1024*t + 128*e}", tag=f"w1f{t}")
    for t in range(4):
        a.lgwait(f"w1f{t}")
        a(f"{MF} v[40:43], {v(144+4*t,4)}, {v(128+4*t,4)}, {'0' if t == 0 else 'v[40:43]'}")
    for p in range(8): a(f"ds_read_b64_tr_b16 {v(64+2*p,2)}, v{112+p} offset:4096", tag="w2f")
    a("ds_write_b128 v7, v[40:43]")
    a("s_waitcnt lgkmcnt(0)\ns_barrier")
    for w in range(4): a(f"ds_read_b128 {v(40+4*w,4)}, v9 offset:{1024*w}", tag="hx")
    a.lg0()
    for i in range(4): a(f"v_add_f32 v{40+i}, v{40+i}, v{44+i}\nv_add_f32 v{48+i}, v{48+i}, v{52+i}")
    for i in range(4): a(f"v_add_f32 v{16+i}, v{40+i}, v{48+i}")
    a("v_cvt_pk_bf16_f32 v20, v16, v17\nv_cvt_pk_bf16_f32 v21, v18, v19")
    a("v_lshlrev_b32 v16, 16, v20\nv_and_b32 v17, 0xffff0000, v20\nv_lshlrev_b32 v18, 16, v21\nv_and_b32 v19, 0xffff0000, v21")
    for i in range(4): a(f"v_mul_f32 v{20+i}, s59, v{16+i}")
    for i in range(4): a(f"v_exp_f32 v{20+i}, v{20+i}")
    for i in range(4): a(f"v_add_f32 v{20+i}, 1.0, v{20+i}")
    for i in range(4): a(f"v_rcp_f32 v{20+i}, v{20+i}")
    for i in range(4): a(f"v_mul_f32 v{16+i}, v{16+i}, v{20+i}")
    a("v_cvt_pk_bf16_f32 v20, v16, v17\nv_cvt_pk_bf16_f32 v21, v18, v19")
    for p in range(8): a(f"v_mfma_f32_16x16x16_bf16 {v(80+4*p,4)}, v[20:21], {v(64+2*p,2)}, 0")
    for q in range(4): a(f"v_cndmask_b32 v{52+q}, v{80+4*q}, v{96+4*q}, s[68:69]")
    for q in range(4): a(f"v_and_or_b32 v{52+q}, v{52+q}, v11, {TN}")
    a("buffer_store_dwordx4 v[52:55], v10, s[36:39], s62 offen sc1")
    a("L_a_noffn:")
    stamp(a, 10, prm)
    a("s_cmp_ge_u32 s60, 64\ns_cbranch_scc1 L_a_end\ns_cmp_lg_u32 s3, 0\ns_cbranch_scc1 L_a_end")
    srd(a, 40, "gate")
    a("s_lshr_b32 s53, s60, 5\ns_lshl_b32 s53, s53, 10")
    a("buffer_load_dwordx4 v[16:19], v9, s[32:35], s53 offen\nbuffer_load_dwordx4 v[20:23], v9, s[40:43], 0 offen", tag="gt")
    srd(a, 44, "out")
    a(f"""
    s_lshr_b32 s52, s60, 1
    s_lshl_b32 s54, s52, 14
    s_and_b32 s53, s60, 1
    s_lshl_b32 s55, s53, 6
    s_add_u32 s54, s54, s55
    s_add_u32 s54, s54, {WS_F}
    s_add_u32 s55, s54, 4096
    s_add_u32 s56, s54, 8192
    s_add_u32 s57, s54, 12288
    v_lshrrev_b32 v5, 2, v1
    v_lshlrev_b32 v5, 7, v5
    v_and_b32 v4, 3, v1
    v_lshl_add_u32 v5, v4, 4, v5
    v_lshlrev_b32 v4, 1, v4
    v_lshl_add_u32 v4, v3, 5, v4
    s_lshr_b32 s58, s52, 1
    s_lshl_b32 s58, s58, 7
    s_and_b32 s59, s52, 1
    s_lshl_b32 s59, s59, 4
    s_add_u32 s58, s58, s59
    s_lshl_b32 s59, s53, 3
    s_add_u32 s58, s58, s59
    s_lshl_b32 s59, s60, 8
    s_add_u32 s59, s59, {WS_H2}
    s_mov_b32 s68, 0x000f000f
    s_mov_b32 s69, 0x000f000f
    s_mov_b32 s52, {WS_E}
    s_mov_b32 s53, {f32(-LOG2E)}
    """)
    a.vmwait("gt")
    for i in range(4):
        a(f"""
        v_lshlrev_b32 v24, 16, v{16+i}
        v_and_b32 v25, 0xffff0000, v{16+i}
        v_lshlrev_b32 v26, 16, v{20+i}
        v_and_b32 v27, 0xffff0000, v{20+i}
        v_mul_f32 v24, v24, v26
        v_mul_f32 v25, v25, v27
        v_cvt_pk_bf16_f32 v24, v24, v25
        v_lshlrev_b32 v25, 16, v24
        v_and_b32 v24, 0xffff0000, v24
        """)
        a("v_add_f32 v28, v24, v25" if i == 0 else "v_add_f32 v28, v28, v24\nv_add_f32 v28, v28, v25")
    allreduce(a, "v_add_f32", [28], [29])
    rnd_bf16(a, 28)
    a("v_mul_f32 v28, s53, v28\nv_exp_f32 v28, v28\nv_add_f32 v28, 1.0, v28\nv_rcp_f32 v28, v28")
    rnd_bf16(a, 28)
    a("v_sub_f32 v29, 1.0, v28")
    rnd_bf16(a, 29)
    def reduce4(x):
        for sh in (4, 8):
            for i in range(4): a(f"v_add_f32_dpp v{x+i}, v{x+i}, v{x+i} row_ror:{sh} {DPPM}")
        a(f"""
        v_permlane16_swap_b32 v{x}, v{x+1}
        v_permlane16_swap_b32 v{x+2}, v{x+3}
        v_add_f32 v{x}, v{x}, v{x+1}
        v_add_f32 v{x+2}, v{x+2}, v{x+3}
        v_permlane32_swap_b32 v{x}, v{x+2}
        v_add_f32 v{x}, v{x}, v{x+2}
        """)
        rnd_bf16(a, x)
    def gather(lab, sets):
        a(f"s_mov_b32 s67, 0\n{lab}:")
        for nld, sb, vd, vs in sets:
            for u in range(nld): a(f"buffer_load_dwordx4 {v(vd+4*u,4)}, v5, s[36:39], s{sb + u//2} offen offset:{2048*(u%2)} sc1", tag=f"{lab}{vd}_{u}")
        a("s_add_u32 s67, s67, 1")
        first = True
        for nld, sb, vd, vs in sets:
            for u in range(nld):
                a.vmwait(f"{lab}{vd}_{u}")
                tagchk(a, 30, vd + 4 * u, first, fp32=True); first = False
                if u == 1:
                    for i in range(4): a(f"v_add_f32 v{vs+i}, v{vd+i}, v{vd+4+i}")
                if u > 1:
                    for i in range(4): a(f"v_add_f32 v{vs+i}, v{vs+i}, v{vd+4*u+i}")
            if vs == 40 and len(sets) > 1:
                reduce4(40); a("v_mul_f32 v36, v29, v40"); rnd_bf16(a, 36)
        a(f"""
        v_and_b32 v30, 0xff, v30
        v_cmp_ne_u32 vcc, 0, v30
        s_cmp_ge_u32 s67, {SPIN}
        s_cbranch_scc1 {lab}_ok
        s_cbranch_vccnz {lab}
        {lab}_ok:
        """)
    for i in range(4): a(f"s_sub_u32 s{62+i}, s{54+i}, {WS_F - WS_A}")
    if not prm.merge:
        gather("L_f_b", [(7, 54, 96, 40)])
        reduce4(40); a("v_mul_f32 v36, v29, v40"); rnd_bf16(a, 36)
        if prm.stamps: a("s_mov_b32 s92, s67")
    flag_poll(a, "L_f_h2", 30, "s59")
    stamp(a, 9, prm)
    gather("L_f_a", ([(7, 54, 96, 40)] if prm.merge else []) + [(8, 62, 64, 32)])
    reduce4(32)
    a("v_mul_f32 v37, v28, v32")
    rnd_bf16(a, 37)
    a("v_add_f32 v37, v37, v36\nv_cvt_pk_bf16_f32 v37, v37, v37\ns_mov_b64 exec, s[68:69]")
    if prm.stamps: a("s_mov_b32 s94, s67")
    a("buffer_store_short v37, v4, s[44:47], s58 offen")
    a("s_cmp_lg_u32 s60, 0\ns_cbranch_scc1 L_a_end\ns_mov_b64 exec, 1")
    a("buffer_store_dword v39, off, s[36:39], s52 sc1")
    a("L_a_end:")
    stamp(a, 13, prm)
    stamp_out(a, prm, 15)
    a("s_endpgm")

def gen(prm):
    a = Asm(); a.role = "X"
    a("s_cmp_ge_u32 s2, 256\ns_cbranch_scc1 L_exit")
    stamp(a, 0, prm)
    a("""
    s_load_dwordx16 s[4:19], s[0:1], 0
    s_load_dwordx8 s[20:27], s[0:1], 64
    s_load_dwordx2 s[28:29], s[0:1], 96
    v_lshrrev_b32 v1, 6, v0
    s_and_b32 s30, s2, 7
    v_readfirstlane_b32 s3, v1
    s_lshr_b32 s31, s2, 3
    v_and_b32 v1, 63, v0
    v_and_b32 v2, 15, v0
    v_bfe_u32 v3, v0, 4, 2
    """)
    if prm.stamps:
        for i in range(1, 15): a(f"s_mov_b32 s{70+2*i}, 0")
    if prm.icpf:
        a("""
        s_and_b32 s32, s31, 7
        s_or_b32 s32, s32, s3
        s_cmp_lg_u32 s32, 0
        s_cbranch_scc1 L_nopf
        s_getpc_b64 s[32:33]
        L_pc:
        s_mov_b32 s34, L_exit-L_pc
        v_lshlrev_b32 v4, 7, v1
        """)
        for k in range(3):
            a("v_min_u32 v5, s34, v4")
            a("global_load_dword v127, v5, s[32:33]", count=False)
            a("v_add_u32 v4, 0x2000, v4")
        a("L_nopf:")
    a("s_cmp_lt_u32 s31, 16\ns_cbranch_scc1 L_wgt")
    gen_att(a, prm)
    a.vm = []; a.lg = []
    gen_wgt(a, prm)
    a("L_exit:\ns_endpgm")
    return a

HEADER = """Fused decode step: latent-KV attention (weights absorbed) + SiLU FFN + sigmoid gate.
One persistent launch, 256 workgroups: 128 weight-side workgroups and 128 attention workgroups."""

def emit(prm, path):
    a = gen(prm)
    txt = kernel_file([dict(name=NAME + "_kernel", body=a.text(), grid=256, block=256, lds=LDS_BYTES, vgpr=512, accum=256, sgpr=102)], HEADER)
    open(path, "w").write(txt)
    return a

if __name__ == "__main__":
    prm = P()
    out = sys.argv[1] if len(sys.argv) > 1 else "k.s"
    for kv in sys.argv[2:]:
        k, val = kv.split("=", 1)
        cur = getattr(prm, k)
        setattr(prm, k, (val == "1") if isinstance(cur, bool) else val.replace("_", " ") if isinstance(cur, str) else int(val))
    a = emit(prm, out)
    print("instrs", len(a.ins), "nops", a.nnop, "lds", LDS_BYTES)
```

```python
import sys
from asmlib import *

SZ = {0: 2048, 1: 16 << 20, 2: 4 << 20, 3: 4 << 20, 4: 4 << 20, 5: 4 << 20, 6: 2048, 7: 512 * 1792 * 2, 8: 512 * 1792 * 2, 9: 1024, 10: 2048, 11: 256, 12: WS_BYTES}

def prologue(a, nwg=256):
    a(f"""
    s_cmp_ge_u32 s2, {nwg}
    s_cbranch_scc1 L_end
    s_memrealtime s[64:65]
    s_load_dwordx16 s[4:19], s[0:1], 0
    s_load_dwordx8 s[20:27], s[0:1], 64
    s_load_dwordx2 s[28:29], s[0:1], 96
    v_lshrrev_b32 v1, 6, v0
    v_and_b32 v2, 63, v0
    s_nop 0
    v_readfirstlane_b32 s3, v1
    s_and_b32 s30, s2, 7
    s_lshr_b32 s31, s2, 3
    s_waitcnt lgkmcnt(0)
    """)

def srd(a, d, idx):
    p = 4 + 2 * idx
    a(f"""
    s_mov_b32 s{d}, s{p}
    s_mov_b32 s{d+1}, s{p+1}
    s_mov_b32 s{d+2}, {SZ[idx]}
    s_mov_b32 s{d+3}, 0x20000
    """)

def stamp(a, i):
    a(f"s_memrealtime s[{64+2*i}:{65+2*i}]")

def epilogue(a, nst):
    srd(a, 32, 12)
    a(f"""
    s_waitcnt lgkmcnt(0)
    s_lshl_b32 s36, s2, 2
    s_add_u32 s36, s36, s3
    s_lshl_b32 s36, s36, 6
    s_add_u32 s36, s36, {STAMP_OFF}
    v_mov_b32 v1, 0
    """)
    for i in range(nst):
        a(f"v_mov_b32 v3, s{64+2*i}")
        a(f"buffer_store_dword v3, v1, s[32:35], s36 offen offset:{4*i}")
    a("L_end:\ns_endpgm")

def reg(n, cnt=4):
    if n < 256: return f"v[{n}:{n+cnt-1}]"
    return f"a[{n-256}:{n-256+cnt-1}]"

def gen_A(flags=""):
    a = Asm(); prologue(a)
    a("v_lshlrev_b32 v3, 4, v2")
    order = [(2, 16), (3, 16), (1, 64), (4, 16), (5, 16), (7, 7), (8, 7)]
    r = 8; cnts = []
    sr = 32
    for idx, kb in order:
        srd(a, sr, idx)
        n = (kb + 3) // 4
        a(f"s_mul_i32 s40, s2, {kb*1024}")
        a(f"s_mul_i32 s41, s3, {n*1024}")
        a("s_add_u32 s40, s40, s41")
        for t in range(n):
            if t and t % 4 == 0: a("s_add_u32 s40, s40, 4096")
            a(f"buffer_load_dwordx4 {reg(r)}, v3, s[{sr}:{sr+3}], s40 offen offset:{(t%4)*1024} {flags}")
            r += 4
        cnts.append(n)
        sr = 32 if sr == 36 else 36
        sr = 36 if sr == 32 and False else sr
    stamp(a, 1)
    tot = sum(cnts); done = 0
    for i, n in enumerate(cnts):
        done += n
        a(f"s_waitcnt vmcnt({tot-done})")
        stamp(a, 2 + i)
    epilogue(a, 2 + len(cnts))
    return a.text(), 2 + len(cnts)

def gen_B(flags="", wq_red=True, ckv_red=True, wo_red=True, interleave=False):
    a = Asm(); prologue(a)
    a("""
    s_lshr_b32 s42, s31, 3
    s_lshl_b32 s42, s42, 3
    s_add_u32 s42, s42, s30
    s_and_b32 s43, s31, 7
    s_and_b32 s44, s31, 15
    s_lshl_b32 s44, s44, 3
    s_add_u32 s44, s44, s30
    v_and_b32 v4, 15, v2
    v_lshrrev_b32 v5, 4, v2
    """)
    segs = []
    a("""
    v_lshlrev_b32 v6, 4, v4
    v_lshlrev_b32 v7, 18, v5
    v_add_u32 v6, v6, v7
    """)
    def wq(t, r):
        return [f"buffer_load_dwordx4 {reg(r)}, v6, s[32:35], s40 offen {flags}", "s_add_u32 s40, s40, 8192"]
    srd(a, 32, 2)
    a("s_lshl_b32 s40, s3, 20\ns_lshl_b32 s41, s42, 8\ns_add_u32 s40, s40, s41")
    if not wq_red:
        a("s_lshl_b32 s41, s43, 15\ns_add_u32 s40, s40, s41")
    nwq = 32 if wq_red else 4
    L_wq = [wq(t, 256 + 4 * t) for t in range(nwq)]
    a("""
    v_lshlrev_b32 v8, 13, v4
    v_lshlrev_b32 v7, 4, v5
    v_add_u32 v8, v8, v7
    """)
    srd(a, 36, 3)
    a("s_lshl_b32 s45, s43, 19\ns_lshl_b32 s41, s3, 17\ns_add_u32 s45, s45, s41\ns_lshl_b32 s41, s42, 8\ns_add_u32 s45, s45, s41")
    L_uk = [[f"buffer_load_dwordx4 {reg(16+4*t)}, v8, s[36:39], s45 offen offset:{64*t} {flags}"] for t in range(4)]
    a("v_lshlrev_b32 v3, 4, v2")
    srd(a, 48, 1)
    if ckv_red:
        a("s_lshl_b32 s46, s44, 17\ns_lshl_b32 s41, s3, 15\ns_add_u32 s46, s46, s41")
        nck = 32
    else:
        a("s_lshl_b32 s46, s2, 16\ns_lshl_b32 s41, s3, 14\ns_add_u32 s46, s46, s41")
        nck = 16
    L_ck = []
    for t in range(nck):
        l = [f"buffer_load_dwordx4 {reg(384+4*t)}, v3, s[48:51], s46 offen offset:{(t%4)*1024} {flags}"]
        if t % 4 == 3: l.append("s_add_u32 s46, s46, 4096")
        L_ck.append(l)
    srd(a, 52, 4)
    L_uv = [[f"buffer_load_dwordx4 {reg(32+4*t)}, v8, s[52:55], s45 offen offset:{64*t} {flags}"] for t in range(4)]
    srd(a, 56, 5)
    if wo_red:
        a("s_lshl_b32 s47, s42, 17\ns_lshl_b32 s41, s3, 15\ns_add_u32 s47, s47, s41"); nwo = 32
    else:
        a("s_lshl_b32 s47, s2, 14\ns_lshl_b32 s41, s3, 12\ns_add_u32 s47, s47, s41"); nwo = 4
    L_wo = []
    for t in range(nwo):
        l = [f"buffer_load_dwordx4 {reg(64+4*t)}, v3, s[56:59], s47 offen offset:{(t%4)*1024} {flags}"]
        if t % 4 == 3: l.append("s_add_u32 s47, s47, 4096")
        L_wo.append(l)
    srd(a, 60, 7)
    a("s_mul_i32 s62, s2, 1\n")
    srd(a, 60, 7)
    a("s_mul_i32 s41, s2, 7168\ns_lshl_b32 s96, s3, 11\ns_add_u32 s96, s96, s41")
    L_f1 = [[f"buffer_load_dwordx4 {reg(48+4*t)}, v3, s[60:63], s96 offen offset:{t*1024} {flags}"] for t in range(2)]
    srd(a, 92, 8)
    L_f2 = [[f"buffer_load_dwordx4 {reg(56+4*t)}, v3, s[92:95], s96 offen offset:{t*1024} {flags}"] for t in range(2)]
    groups = [L_wq, L_uk, L_ck, L_uv, L_wo, L_f1 + L_f2]
    seq = []
    if interleave:
        q = list(L_wq); c = list(L_ck)
        for l in L_uk: seq.append((1, l))
        while q:
            seq.append((0, q.pop(0)))
            if len(q) % 2 == 0 and c: seq.append((2, c.pop(0)))
        for l in c: seq.append((2, l))
        for gi in (3, 4, 5):
            for l in groups[gi]: seq.append((gi, l))
    else:
        for gi, g in enumerate(groups):
            for l in g: seq.append((gi, l))
    last = {}
    for n, (gi, l) in enumerate(seq): last[gi] = n
    pend = sorted((n, gi) for gi, n in last.items())
    issued = 0
    AHEAD = 60
    for n, gi in pend:
        while issued < len(seq) and issued <= n + AHEAD - 1 and issued - 0 < len(seq):
            if issued > n + AHEAD - 1: break
            for x in seq[issued][1]: a(x)
            issued += 1
        a(f"s_waitcnt vmcnt({issued - n - 1})")
        stamp(a, 1 + gi)
    epilogue(a, 7)
    return a.text(), 7

if __name__ == "__main__":
    variants = {
        "A": gen_A(), "Ant": gen_A("nt"),
        "Bfull": gen_B(), "Bfull_il": gen_B(interleave=True), "Bnr": gen_B(wq_red=False, ckv_red=False, wo_red=False),
        "Bckv": gen_B(wq_red=False, ckv_red=True, wo_red=False),
        "Bwq": gen_B(wq_red=True, ckv_red=True, wo_red=False),
        "Bfull_nt": gen_B("nt"),
    }
    import json
    meta = {}
    for k, (body, nst) in variants.items():
        open(f"mb1_{k}.s", "w").write(kernel_file([dict(name=NAME + "_kernel", body=body, grid=256, block=256, lds=90000)]))
        meta[k] = nst
    json.dump(meta, open("mb1_meta.json", "w"))
```

```python
import json, sys
from asmlib import *
from mb1 import *
def gen(npf, k, store):
    a = Asm(); prologue(a)
    srd(a, 48, 1); srd(a, 32, 12)
    a("s_cmp_ge_u32 s31, 4\ns_cbranch_scc1 L_skip")
    a("v_lshlrev_b32 v3, 4, v2\nv_lshlrev_b32 v4, 7, v2\ns_lshl_b32 s46, s2, 18\ns_lshl_b32 s41, s3, 16\ns_add_u32 s46, s46, s41\ns_add_u32 s47, s46, 32768")
    for i in range(4): a(f"v_mov_b32 v{8+i}, 1.0")
    a("s_barrier")
    stamp(a, 1)
    a("s_mov_b32 exec_hi, 0")
    for i in range(npf): a(f"buffer_load_dword v12, v4, s[48:51], s47 offen\ns_add_u32 s47, s47, 4096")
    a("s_mov_b32 exec_hi, -1")
    for t in range(k):
        if store: a(f"buffer_store_dwordx4 v[8:11], v3, s[32:35], s46 offen sc1")
        else: a(f"buffer_load_dwordx4 {reg(16+4*t)}, v3, s[48:51], s46 offen")
        a("s_add_u32 s46, s46, 1024")
    stamp(a, 2)
    a("s_waitcnt vmcnt(0)")
    stamp(a, 3)
    a("s_branch L_fin\nL_skip:"); stamp(a, 1); stamp(a, 2); stamp(a, 3); a("L_fin:")
    epilogue(a, 4)
    return a.text(), 4
V = {}
for k in (8, 9, 10, 11, 12, 14, 16): V[f"ld{k}"] = gen(0, k, False)
for npf in (0, 1, 2, 4):
    for k in (4, 6, 8): V[f"pf{npf}_st{k}"] = gen(npf, k, True)
meta = {}
for k, (body, nst) in V.items():
    open(f"mb16_{k}.s", "w").write(kernel_file([dict(name=NAME + "_kernel", body=body, grid=256, block=256, lds=90000)]))
    meta[k] = nst
json.dump(meta, open("mb16_meta.json", "w"))
```

```python
import json
from asmlib import *
from mb1 import *
def gen():
    a = Asm(); prologue(a, 1)
    srd(a, 32, 12)
    a("s_cmp_lg_u32 s3, 0\ns_cbranch_scc1 L_end")
    a("v_lshlrev_b32 v3, 4, v2\nv_lshlrev_b32 v4, 5, v2\nv_lshlrev_b32 v5, 2, v2\ns_mov_b32 s40, 4096\ns_mov_b32 s41, 8192\ns_mov_b32 s42, 12288")
    a("buffer_load_dwordx4 v[8:11], v3, s[32:35], 0 offen\nbuffer_load_dwordx4 v[12:15], v4, s[32:35], s40 offen\nbuffer_load_dwordx4 v[16:19], v4, s[32:35], s40 offen offset:16\nbuffer_load_dword v20, v5, s[32:35], s41 offen")
    for i in range(4): a(f"v_mov_b32 v{24+i}, 0")
    a("s_waitcnt vmcnt(0)\ns_nop 4")
    a("v_smfmac_f32_16x16x64_bf16 v[24:27], v[8:11], v[12:19], v20\ns_nop 15\ns_nop 15")
    a("buffer_store_dwordx4 v[24:27], v3, s[32:35], s42 offen\ns_waitcnt vmcnt(0)")
    stamp(a, 1)
    for i in range(256): a(f"v_smfmac_f32_16x16x64_bf16 v[{32+4*(i%8)}:{35+4*(i%8)}], v[8:11], v[12:19], v20")
    a("s_nop 15"); stamp(a, 2)
    for i in range(256): a(f"v_mfma_f32_16x16x32_bf16 v[{32+4*(i%8)}:{35+4*(i%8)}], v[8:11], v[12:15], v[{32+4*(i%8)}:{35+4*(i%8)}]")
    a("s_nop 15"); stamp(a, 3)
    epilogue(a, 4)
    return a.text()
open("mb17.s", "w").write(kernel_file([dict(name=NAME + "_kernel", body=gen(), grid=1, block=64, lds=0)]))
```
